```python
import torch

def _softmax(x, axis=-1):
    return torch.softmax(x, dim=axis)
def _gelu(x):
    return torch.nn.functional.gelu(x, approximate="tanh")
def _silu(x):
    return torch.nn.functional.silu(x)
def _sigmoid(x):
    return torch.sigmoid(x)
def _layernorm(x, axis=-1, eps=1e-5):
    m = x.mean(dim=axis, keepdim=True)
    v = x.var(dim=axis, keepdim=True, unbiased=False)
    return (x - m) / torch.sqrt(v + eps)
def _scatter_add(tgt, idx, src, axis=0):
    return tgt.clone().index_add_(axis, idx, src)
def _segment_sum(src, seg, n):
    out = torch.zeros((n,) + src.shape[1:], dtype=src.dtype)
    return out.index_add_(0, seg, src)
def _pad(x, pw):
    flat = tuple(v for pair in reversed(pw) for v in pair)
    return torch.nn.functional.pad(x, flat)

kernel_name = 'sequential_preLN__mha_block_cached__geglu_ffn__decode'

def setup_inputs():

    _w = (lambda a: (lambda t: t.to(torch.bfloat16) if t.is_floating_point() else t)(torch.as_tensor(a)))
    def _A_setup():
        B, Sq, D = 8, 1, 640
        H, Sk, Dh = 32, 4096, 128
        return {
            "x": _w((lambda *s: torch.randn(*s, dtype=torch.bfloat16) * 0.05)(B, Sq, D)),
            "k_cache": _w((lambda *s: torch.randn(*s, dtype=torch.bfloat16) * 3.2)(B, H, Sk, Dh)),
            "v_cache": _w((lambda *s: torch.randn(*s, dtype=torch.bfloat16) * 0.4)(B, H, Sk, Dh)),
            "wq": _w((lambda *s: torch.randn(*s, dtype=torch.bfloat16) * 3.2)(D, H * Dh) * (D ** -0.5)),
            "wo": _w((lambda *s: torch.randn(*s, dtype=torch.bfloat16) * 0.4)(H * Dh, D) * ((H * Dh) ** -0.5)),
        }
    _A_in = _A_setup()

    def _B_setup():
        B, S, D, F = 8, 1, 640, 1728
        return {
            "x": _w((lambda *s: torch.randn(*s, dtype=torch.bfloat16) * 0.05)(B, S, D)),
            "w_gate": _w((lambda *s: torch.randn(*s, dtype=torch.bfloat16) * 0.05)(D, F)),
            "w_up": _w((lambda *s: torch.randn(*s, dtype=torch.bfloat16) * 0.05)(D, F)),
            "w_down": _w((lambda *s: torch.randn(*s, dtype=torch.bfloat16) * 0.05)(F, D)),
        }
    _B_in = _B_setup()

    return {
        "A_x": _A_in["x"],
        "A_k_cache": _A_in["k_cache"],
        "A_v_cache": _A_in["v_cache"],
        "A_wq": _A_in["wq"],
        "A_wo": _A_in["wo"],
        "B_x": _B_in["x"],
        "B_w_gate": _B_in["w_gate"],
        "B_w_up": _B_in["w_up"],
        "B_w_down": _B_in["w_down"],
    }

def reference(A_x, A_k_cache, A_v_cache, A_wq, A_wo, B_x, B_w_gate, B_w_up, B_w_down):
    def _A_ref(x, k_cache, v_cache, wq, wo):
        B, Sq, D = x.shape
        H, Dh = 32, 128
        q = (lambda x, *d: x.permute(*d))((x @ wq).reshape(B, Sq, H, Dh), 0, 2, 1, 3)
        scores = torch.einsum("bhqd,bhkd->bhqk", q, k_cache) * (Dh ** -0.5)
        p = _softmax(scores, axis=-1)
        o = torch.einsum("bhqk,bhkd->bhqd", p, v_cache)
        return (lambda x, *d: x.permute(*d))(o, 0, 2, 1, 3).reshape(B, Sq, H * Dh) @ wo

    def _B_ref(x, w_gate, w_up, w_down):
        return (_gelu(x @ w_gate) * (x @ w_up)) @ w_down

    x = A_x
    h = x + _A_ref(_layernorm(x, axis=-1), A_k_cache, A_v_cache, A_wq, A_wo)
    h2 = h + _B_ref(_layernorm(h, axis=-1), B_w_gate, B_w_up, B_w_down)
    return h2
```

```python
import re

TRANS = ("v_exp_f32", "v_log_f32", "v_rcp_f32", "v_rsq_f32", "v_sqrt_f32", "v_sin_f32", "v_cos_f32")

def _regs(tok):
    tok = tok.strip()
    tok = re.sub(r"^-", "", tok)
    m = re.match(r"^abs\((.*)\)$", tok)
    if m: tok = m.group(1)
    tok = tok.strip("|")
    m = re.match(r"^([vas])(\d+)$", tok)
    if m: return [(m.group(1), int(m.group(2)))]
    m = re.match(r"^([vas])\[(\d+):(\d+)\]$", tok)
    if m: return [(m.group(1), i) for i in range(int(m.group(2)), int(m.group(3)) + 1)]
    if tok in ("vcc", "vcc_lo", "vcc_hi"): return [("vcc", 0)]
    if tok == "m0": return [("m0", 0)]
    if tok in ("exec", "exec_lo", "exec_hi"): return [("exec", 0)]
    return []

class Ins:
    def __init__(s, text):
        s.text = text
        t = text.split(";")[0].strip()
        s.label = t.endswith(":")
        s.directive = t.startswith(".")
        s.op = ""; s.w = []; s.r = []; s.kind = "other"; s.dpp = False; s.nop = 1
        s.mf_a = []; s.mf_c = []; s.storedata = []
        if s.label or s.directive or not t:
            s.nop = 0; return
        parts = t.split(None, 1)
        s.op = op = parts[0]
        rest = parts[1] if len(parts) > 1 else ""
        ops = []; cur = ""; depth = 0
        for ch in rest:
            if ch in "[(": depth += 1
            if ch in "])": depth -= 1
            if ch == "," and depth == 0: ops.append(cur); cur = ""
            else: cur += ch
        ops.append(cur)
        mods = ""
        if ops:
            last = ops[-1].strip().split(None, 1)
            if last:
                ops[-1] = last[0]; mods = last[1] if len(last) > 1 else ""
        ops = [o.strip() for o in ops]
        s.mods = mods
        R = lambda i: _regs(ops[i]) if i < len(ops) else []
        if op == "s_nop":
            s.kind = "salu"; s.nop = int(ops[0], 0) + 1
        elif op.startswith("v_mfma"):
            s.kind = "mfma"; s.w = R(0); s.mf_a = R(1) + R(2); s.mf_c = R(3); s.r = s.mf_a + s.mf_c
        elif op.startswith("v_"):
            s.kind = "valu"
            s.dpp = "_dpp" in op or "row_" in mods or "quad_perm" in mods
            if op.startswith("v_cmp"):
                s.w = R(0); s.r = sum((R(i) for i in range(1, len(ops))), [])
            elif op.startswith("v_readfirstlane") or op.startswith("v_readlane"):
                s.w = R(0); s.r = sum((R(i) for i in range(1, len(ops))), []); s.kind = "readlane"
            elif op.startswith("v_permlane"):
                s.w = R(0) + R(1); s.r = R(0) + R(1); s.kind = "permlane"
            elif op.startswith(("v_add_co", "v_sub_co", "v_addc_co", "v_subb_co")):
                s.w = R(0) + R(1); s.r = sum((R(i) for i in range(2, len(ops))), [])
            else:
                s.w = R(0); s.r = sum((R(i) for i in range(1, len(ops))), [])
                if op.startswith(("v_fmac", "v_dot2c")) or s.dpp: s.r += R(0)
                if op.startswith("v_cndmask") and len(ops) == 3: s.r += [("vcc", 0)]
        elif op.startswith(("buffer_", "global_")):
            s.kind = "vmem"
            lds = " lds" in (" " + mods)
            if "load" in op and not lds:
                s.w = R(0); s.r = sum((R(i) for i in range(1, len(ops))), [])
            elif "load" in op:
                s.r = sum((R(i) for i in range(0, len(ops))), []) + [("m0", 0)]; s.kind = "ldsdma"
            elif "atomic" in op:
                s.r = sum((R(i) for i in range(0, len(ops))), [])
                if "sc0" in mods: s.w = R(0)
            elif "store" in op:
                s.r = sum((R(i) for i in range(0, len(ops))), [])
                if "x4" in op or "x3" in op: s.storedata = R(0) if op.startswith("buffer") else R(1)
        elif op.startswith("ds_"):
            s.kind = "ds"
            if "read" in op or "bpermute" in op or "swizzle" in op:
                s.w = R(0); s.r = sum((R(i) for i in range(1, len(ops))), [])
            else:
                s.r = sum((R(i) for i in range(0, len(ops))), [])
        elif op.startswith("s_"):
            s.kind = "salu"
            if op.startswith(("s_cbranch", "s_branch", "s_endpgm", "s_setpc")): s.kind = "branch"
            elif op.startswith(("s_cmp", "s_waitcnt", "s_barrier", "s_sleep", "s_setprio", "s_bitcmp")):
                s.r = sum((R(i) for i in range(0, len(ops))), [])
            else:
                s.w = R(0); s.r = sum((R(i) for i in range(1, len(ops))), [])
    def is_valu(s): return s.kind in ("valu", "readlane", "permlane")

def need(p, c):
    n = 0
    pw = set(p.w); cr = set(c.r); cw = set(c.w)
    vw = {x for x in pw if x[0] in "va"}
    sw = {x for x in pw if x[0] in ("s", "vcc")}
    if p.is_valu():
        if vw & cr:
            if c.dpp: n = max(n, 2)
            if c.kind == "mfma": n = max(n, 2)
            if c.kind == "readlane": n = max(n, 1)
            if c.kind == "permlane": n = max(n, 2)
            if p.op.startswith(TRANS) : n = max(n, 1)
            if "sdwa" in p.op or "op_sel" in getattr(p, "mods", ""): n = max(n, 1)
        if p.op.startswith("v_dot2"):
            if c.op == p.op:
                ab = set(c.r[:-1]) if not p.op.startswith("v_dot2c") else set(c.r[:-1])
                if vw & ab: n = max(n, 3)
            elif vw & (cr | cw): n = max(n, 3)
        if sw & cr:
            if c.is_valu() or c.kind == "mfma": n = max(n, 4 if c.kind == "readlane" else 2)
            if c.kind in ("vmem", "ldsdma"): n = max(n, 5)
        if ("exec", 0) in pw: n = max(n, 5)
    if p.kind == "mfma":
        passes = 8 if "32x32" in p.op else 4
        big = {4: 8, 8: 12}[passes]; ov = {4: 6, 8: 10}[passes]; war = {4: 3, 8: 7}[passes]
        if c.kind == "mfma":
            if vw & set(c.mf_a): n = max(n, big)
            if vw & set(c.mf_c) and list(p.w) != list(c.mf_c): n = max(n, ov)
            elif vw & cw and list(p.w) != list(c.mf_c): n = max(n, big)
        elif vw & (cr | cw): n = max(n, big)
        if c.is_valu() and set(p.mf_c) & cw: n = max(n, war)
    if p.kind == "salu" and ("m0", 0) in pw and ("m0", 0) in cr and c.kind != "salu": n = max(n, 1)
    if p.storedata and set(p.storedata) & cw: n = max(n, 2)
    return n

def worst(p):
    if p.kind == "mfma": return 12 if "32x32" in p.op else 8
    if p.is_valu():
        if any(x[0] in ("s", "vcc", "exec") for x in p.w): return 5
        if p.op.startswith("v_dot2"): return 3
        return 2
    if p.storedata: return 2
    if p.kind == "salu" and ("m0", 0) in p.w: return 1
    return 0

class Asm:
    def __init__(s): s.lines = []
    def __call__(s, text):
        for l in text.split("\n"):
            l = l.strip()
            if l: s.lines.append(l)
    def render(s):
        out = []; hist = []
        for l in s.lines:
            if l.endswith(";opt"):
                out.append(l[:-4].rstrip()); continue
            c = Ins(l)
            if c.nop == 0:
                out.append(l); continue
            req = 0
            for p, d in hist:
                if c.kind == "branch" and not c.op.startswith("s_endpgm"):
                    r = worst(p) - 1
                    if p.is_valu() and p.op.startswith("v_cmp") and False: r = 0
                    req = max(req, r - d)
                else:
                    req = max(req, need(p, c) - d)
            if req > 0:
                out.append(f"s_nop {req-1}")
                hist = [(p, d + req) for p, d in hist]
            out.append(l)
            hist = [(p, d + c.nop) for p, d in hist if d + c.nop < 13]
            hist.append((c, 0))
        return "\n".join(("" if (x.endswith(":") or x.startswith(".") or x.startswith(";")) else "    ") + x for x in out) + "\n"
```

```python
import sys
from asmlib import Asm
KN = "sequential_preLN__mha_block_cached__geglu_ffn__decode_kernel"

SLAB = 0x000000
HOFF = 0x0A0000
ACT  = 0x0A4000
WSN  = 0x0B0000
OOB  = 0x7F000000
L_RED = 0x0000
L_SC  = 0x1000
L_ST  = 0x5000
L_OP  = 0x5400
L_GU  = 0x8000
L_WD  = 0xE000
L_GR  = 0x1000
L_JUNK= 0x2000
LDS_SIZE = 0x15000

def f2u(x):
    import struct
    return "0x%08x" % struct.unpack("<I", struct.pack("<f", x))[0]

def gen(debug=0, stamps=0, wpol="nt", kvpol="nt", sleep=1):
    A = Asm()
    ns = [0]
    def stamp():
        if stamps:
            i = ns[0]; ns[0] += 1
            A(f"s_memrealtime s[{84+2*i}:{85+2*i}]")
    def rbf(v, t):
        A(f"v_cvt_pk_bf16_f32 {t}, {v}, {v}"); A(f"v_lshlrev_b32 {v}, 16, {t}")
    def red_hi(op, regs, tmps):
        for v in regs: A(f"{op}_dpp {v}, {v}, {v} row_ror:8 row_mask:0xf bank_mask:0xf")
        for sw in ("v_permlane16_swap_b32", "v_permlane32_swap_b32"):
            for v, t in zip(regs, tmps): A(f"v_mov_b32 {t}, {v}")
            for v, t in zip(regs, tmps): A(f"{sw} {v}, {t}")
            for v, t in zip(regs, tmps): A(f"{op} {v}, {v}, {t}")
    def red64(op, v, t):
        A(f"{op}_dpp {v}, {v}, {v} quad_perm:[1,0,3,2] row_mask:0xf bank_mask:0xf")
        A(f"{op}_dpp {v}, {v}, {v} quad_perm:[2,3,0,1] row_mask:0xf bank_mask:0xf")
        A(f"{op}_dpp {v}, {v}, {v} row_half_mirror row_mask:0xf bank_mask:0xf")
        red_hi(op, [v], [t])
    def srd(d, lo, hi, n):
        A(f"s_mov_b32 s{d}, {lo}"); A(f"s_mov_b32 s{d+1}, {hi}"); A(f"s_mov_b32 s{d+2}, {n}"); A(f"s_mov_b32 s{d+3}, 0x20000")
    def buildA(aset, src, u):
        b = 16 + 4 * aset
        for r in range(4): A(f"v_and_b32_dpp v{b+r}, {src}, v{4+r} row_newbcast:{u} row_mask:0xf bank_mask:0xf")
    SETS = (64, 128)
    def kv_issue(st, i):
        b = SETS[st] + 4 * i
        A(f"buffer_load_dwordx4 v[{b}:{b+3}], v2, s[28:31], s80 offen offset:{(i&3)*1024} {kvpol}")
        if i & 3 == 3: A("s_add_u32 s80, s80, 16384")
    def wo_issue(u):
        t, s = divmod(u, 5)
        if s == 0 or u == 24: A(f"s_mov_b32 s14, {t*5120}")
        A(f"buffer_load_dwordx4 a[{4*u}:{4*u+3}], v61, s[40:43], s14 offen offset:{s*256} {wpol}")

    A(f"; @launch grid=(256,1,1) block=(256,1,1) lds={LDS_SIZE}")
    A('.amdgcn_target "amdgcn-amd-amdhsa--gfx950"')
    A(".text"); A(f".globl {KN}"); A(".p2align 8"); A(f".type {KN},@function"); A(f"{KN}:")
    A("s_cmp_ge_u32 s2, 256"); A("s_cbranch_scc1 L_end")
    A("s_load_dwordx16 s[4:19], s[0:1], 0")
    A("s_load_dwordx8 s[20:27], s[0:1], 64")
    stamp()
    A("""
    v_and_b32 v1, 63, v0
    v_lshrrev_b32 v45, 6, v0
    v_lshrrev_b32 v46, 4, v1
    v_and_b32 v47, 15, v1
    v_readfirstlane_b32 s3, v45
    s_and_b32 s72, s2, 7
    s_lshr_b32 s73, s2, 3
    s_and_b32 s74, s73, 3
    s_lshl_b32 s75, s72, 2
    s_add_u32 s74, s74, s75
    s_lshr_b32 s75, s73, 2
    s_lshl_b32 s76, s75, 5
    s_add_u32 s76, s76, s74
    s_mul_i32 s77, s75, 1280
    v_lshlrev_b32 v3, 2, v1
    s_mul_i32 s78, s3, 160
    v_mul_u32_u24 v60, 40, v46
    v_add_u32 v60, s78, v60
    v_add_u32 v62, v60, v47
    v_lshlrev_b32 v62, 1, v62
    v_lshlrev_b32 v60, 13, v60
    v_lshlrev_b32 v63, 4, v47
    v_add_u32 v60, v60, v63
    s_lshl_b32 s78, s74, 8
    v_add_u32 v60, s78, v60
    s_lshl_b32 s78, s3, 12
    v_lshlrev_b32 v2, 4, v1
    v_add_u32 v2, s78, v2
    s_lshl_b32 s78, s76, 20
    s_lshr_b32 s79, s76, 12
    s_waitcnt lgkmcnt(0)
    """)
    srd(48, "s4", "s5", 10240)
    for j in range(5): A(f"buffer_load_dword v{48+j}, v3, s[48:51], s77 offen offset:{256*j}")
    for m in range(3): A(f"buffer_load_ushort v{53+m}, v62, s[48:51], s77 offen offset:{32*m}")
    srd(36, "s10", "s11", 640 * 8192)
    srd(44, "s26", "s27", "0x40000000" if (debug or stamps) else WSN)
    A(f"""
    s_mul_i32 s14, s76, 2560
    s_mul_i32 s15, s3, 640
    s_add_u32 s14, s14, s15
    s_mul_i32 s15, s72, 1280
    s_lshl_b32 s82, s73, 6
    s_add_u32 s82, s82, s15
    s_add_u32 s15, s82, {HOFF - 640}
    s_mul_i32 s83, s72, 27
    s_add_u32 s83, s83, s73
    s_lshl_b32 s81, s83, 7
    s_add_u32 s81, s81, {ACT - 704}
    s_cmp_lt_u32 s73, 20
    s_cselect_b32 s15, s15, {OOB}
    s_cmp_lt_u32 s73, 27
    s_cselect_b32 s81, s81, {OOB}
    s_cmp_eq_u32 s3, 0
    s_cselect_b32 s15, s15, {OOB}
    s_cselect_b32 s81, s81, {OOB}
    v_lshlrev_b32 v56, 4, v1
    v_add_u32 v57, s14, v56
    v_add_u32 v58, s15, v56
    v_cmp_le_u32 vcc, 40, v1
    v_cndmask_b32 v57, v57, v58, vcc
    v_add_u32 v58, s81, v56
    v_cmp_le_u32 vcc, 44, v1
    v_cndmask_b32 v57, v57, v58, vcc
    v_mov_b32 v58, {OOB}
    v_cmp_le_u32 vcc, 52, v1
    v_cndmask_b32 v57, v57, v58, vcc
    v_mov_b32 v192, -1
    v_mov_b32 v193, -1
    v_mov_b32 v194, -1
    v_mov_b32 v195, -1
    buffer_store_dwordx4 v[192:195], v57, s[44:47], 0 offen sc1
    """)
    for t in range(40):
        A(f"s_mov_b32 s14, {t*8192}")
        A(f"buffer_load_dwordx4 a[{4*t}:{4*t+3}], v60, s[36:39], s14 offen {wpol}")
    A("s_add_u32 s28, s6, s78"); A("s_addc_u32 s29, s7, s79"); A("s_mov_b32 s30, 0x100000"); A("s_mov_b32 s31, 0x20000")
    A("s_mov_b32 s80, 0")
    for i in range(16): kv_issue(0, i)
    A("s_add_u32 s8, s8, s78"); A("s_addc_u32 s9, s9, s79")
    srd(40, "s12", "s13", 4096 * 1280)
    srd(52, "s16", "s17", 640 * 3456)
    srd(56, "s18", "s19", 640 * 3456)
    srd(60, "s20", "s21", 1728 * 1280)
    srd(64, "s22", "s23", 10240)
    srd(68, "s24", "s25", 256)
    A(f"s_add_u32 s32, s26, {ACT}"); A("s_addc_u32 s33, s27, 0"); A(f"s_mov_b32 s34, {216*128}"); A("s_mov_b32 s35, 0x20000")
    A("s_mov_b32 s10, 0xcccccccc"); A("s_mov_b32 s11, 0xcccccccc"); A("s_mov_b32 s12, 0xaaaaaaaa"); A("s_mov_b32 s13, 0xaaaaaaaa")
    A("""
    v_and_b32 v56, 1, v47
    v_lshlrev_b32 v56, 4, v56
    v_mov_b32 v57, 0xffff
    v_lshlrev_b32 v56, v56, v57
    v_lshrrev_b32 v57, 1, v47
    """)
    for r in range(4):
        A(f"v_cmp_eq_u32 vcc, {r}, v57"); A(f"v_cndmask_b32 v{4+r}, 0, v56, vcc")
    A("""
    s_lshl_b32 s14, s74, 7
    s_lshl_b32 s15, s3, 5
    s_add_u32 s14, s14, s15
    v_add_u32 v61, s14, v46
    v_mul_u32_u24 v61, 1280, v61
    v_add_u32 v61, v61, v63
    """)
    A("s_waitcnt vmcnt(57)")
    for j in range(5):
        A(f"v_lshlrev_b32 v{24+2*j}, 16, v{48+j}"); A(f"v_and_b32 v{25+2*j}, 0xffff0000, v{48+j}")
    A("v_add_f32 v34, v24, v25")
    for j in range(2, 10): A(f"v_add_f32 v34, v34, v{24+j}")
    red64("v_add_f32", "v34", "v36")
    A(f"v_mul_f32 v34, {f2u(1/640)}, v34")
    A("v_mov_b32 v35, 0")
    for j in range(10):
        A(f"v_sub_f32 v36, v{24+j}, v34"); A("v_fmac_f32 v35, v36, v36")
    red64("v_add_f32", "v35", "v36")
    A(f"v_mul_f32 v35, {f2u(1/640)}, v35")
    def ln_consts(m, v, rc, t):
        rbf(m, t); rbf(v, t)
        A(f"v_add_f32 {v}, {f2u(1e-5)}, {v}"); rbf(v, t)
        A(f"v_sqrt_f32 {v}, {v}"); rbf(v, t)
        A(f"v_rcp_f32 {rc}, {v}")
    ln_consts("v34", "v35", "v37", "v36")
    for m in range(3):
        x = f"v{53+m}"
        A(f"v_lshlrev_b32 {x}, 16, {x}"); A(f"v_sub_f32 {x}, {x}, v34"); rbf(x, "v36")
        A(f"v_mul_f32 v38, {x}, v37"); A(f"v_fma_f32 v39, -v38, v35, {x}"); A(f"v_fma_f32 v38, v39, v37, v38")
        A(f"v_cvt_pk_bf16_f32 {x}, v38, v38")
    for t in range(40):
        buildA(t & 1, f"v{53+(t>>4)}", t & 15)
        A("s_waitcnt vmcnt(55)")
        b = 16 + 4 * (t & 1)
        A(f"v_mfma_f32_16x16x32_bf16 v[12:15], v[{b}:{b+3}], a[{4*t}:{4*t+3}], {'0' if t == 0 else 'v[12:15]'}")
        if t < 16: kv_issue(1, t)
        else: wo_issue(t - 16)
    A(f"""
    v_lshlrev_b32 v58, 5, v47
    v_and_b32 v59, 1, v46
    v_lshlrev_b32 v59, 4, v59
    v_add_u32 v58, v58, v59
    v_lshrrev_b32 v59, 1, v46
    v_lshlrev_b32 v59, 9, v59
    v_add_u32 v58, v58, v59
    s_lshl_b32 s14, s3, 10
    v_add_u32 v58, s14, v58
    v_lshlrev_b32 v59, 5, v47
    ds_write_b128 v58, v[12:15] offset:{L_RED}
    s_waitcnt lgkmcnt(0)
    s_barrier
    """)
    for w in range(4):
        A(f"ds_read_b128 v[{24+8*w}:{27+8*w}], v59 offset:{L_RED + w*1024}")
        A(f"ds_read_b128 v[{28+8*w}:{31+8*w}], v59 offset:{L_RED + w*1024 + 16}")
    A("s_cmp_lg_u32 s3, 0"); A("s_cbranch_scc1 L_nosig")
    A("v_mov_b32 v56, 0"); A("v_mov_b32 v57, 1"); A("s_mov_b64 exec, 1")
    A("buffer_atomic_add v57, v56, s[68:71], 0 offen sc1")
    A("s_mov_b64 exec, -1")
    A("L_nosig:")
    A("s_waitcnt lgkmcnt(0)")
    for e in range(8):
        A(f"v_add_f32 v{24+e}, v{24+e}, v{32+e}"); A(f"v_add_f32 v{40+e}, v{40+e}, v{48+e}")
    for e in range(8): A(f"v_add_f32 v{24+e}, v{24+e}, v{40+e}")
    for r in range(4): A(f"v_cvt_pk_bf16_f32 v{8+r}, v{24+2*r}, v{25+2*r}")
    A("v_lshrrev_b32 v46, 4, v1"); A("v_and_b32 v47, 15, v1")
    if debug:
        A("s_lshl_b32 s14, s76, 8"); A("s_add_u32 s14, s14, 0x1000000")
        A("buffer_store_dwordx4 v[8:11], v63, s[44:47], s14 offen")
    A(f"s_lshl_b32 s14, s3, 12"); A(f"s_add_u32 s14, s14, {L_SC}")
    A("v_lshlrev_b32 v44, 2, v1"); A("v_add_u32 v44, s14, v44")
    A(f"s_mov_b32 s16, {f2u(128 ** -0.5)}")
    stamp()
    def kbody(st, N):
        for i in range(16):
            b = SETS[st] + 4 * i
            A(f"s_waitcnt vmcnt({N})")
            A(f"v_dot2_f32_bf16 v{24+i}, v{b}, v8, 0")
            for r in range(1, 4): A(f"v_dot2_f32_bf16 v{24+i}, v{b+r}, v{8+r}, v{24+i}")
            kv_issue(st, i)
        for u in range(8):
            A(f"v_add_f32_dpp v{24+u}, v{24+u}, v{24+u} row_ror:8 row_mask:0xf bank_mask:0x3")
        for u in range(8):
            A(f"v_add_f32_dpp v{24+u}, v{32+u}, v{32+u} row_ror:8 row_mask:0xf bank_mask:0xc")
        for u in range(4):
            A(f"v_add_f32_dpp v{24+u}, v{24+u}, v{24+u} row_shl:4 row_mask:0xf bank_mask:0x5")
        for u in range(4):
            A(f"v_add_f32_dpp v{24+u}, v{28+u}, v{28+u} row_shr:4 row_mask:0xf bank_mask:0xa")
        A("""
        v_cndmask_b32 v28, v24, v26, s[10:11]
        v_cndmask_b32 v29, v26, v24, s[10:11]
        v_cndmask_b32 v30, v25, v27, s[10:11]
        v_cndmask_b32 v31, v27, v25, s[10:11]
        v_add_f32_dpp v28, v29, v28 quad_perm:[2,3,0,1] row_mask:0xf bank_mask:0xf
        v_add_f32_dpp v30, v31, v30 quad_perm:[2,3,0,1] row_mask:0xf bank_mask:0xf
        v_cndmask_b32 v24, v28, v30, s[12:13]
        v_cndmask_b32 v25, v30, v28, s[12:13]
        v_add_f32_dpp v24, v25, v24 quad_perm:[1,0,3,2] row_mask:0xf bank_mask:0xf
        """)
        rbf("v24", "v25")
        A("v_mul_f32 v24, s16, v24")
        rbf("v24", "v25")
        A("ds_write_b32 v44, v24"); A("v_add_u32 v44, 256, v44")
    kbody(0, 55); kbody(1, 55)
    for u in range(24, 40): wo_issue(u)
    A(f"""
    s_lshl_b32 s14, s83, 4
    s_cmp_lt_u32 s73, 27
    s_cselect_b32 s14, s14, {OOB}
    v_mul_u32_u24 v56, 3456, v1
    v_add_u32 v56, s14, v56
    s_mul_i32 s15, s3, {64*3456}
    s_mul_i32 s17, s3, 6144
    s_add_u32 s17, s17, {L_GU}
    """)
    for i in range(3):
        for mtx, sr in enumerate((52, 56)):
            A("s_mov_b32 m0, s17"); A("s_add_u32 s17, s17, 1024")
            A(f"buffer_load_dwordx4 v56, s[{sr}:{sr+3}], s15 offen {wpol} lds")
        A(f"s_add_u32 s15, s15, {256*3456}")
    A(f"""
    s_mul_i32 s18, s72, 10
    s_add_u32 s18, s18, s73
    s_lshl_b32 s14, s18, 4
    s_cmp_lt_u32 s73, 10
    s_cselect_b32 s14, s14, {OOB}
    v_mul_u32_u24 v56, 1280, v1
    v_add_u32 v56, s14, v56
    s_mul_i32 s15, s3, {64*1280}
    s_mul_i32 s17, s3, 7168
    s_add_u32 s17, s17, {L_WD}
    """)
    for i in range(7):
        A("s_mov_b32 m0, s17"); A("s_add_u32 s17, s17, 1024")
        A(f"buffer_load_dwordx4 v56, s[60:63], s15 offen {wpol} lds")
        A(f"s_add_u32 s15, s15, {256*1280}")
    kbody(0, 60); kbody(1, 60)
    A("s_mov_b32 s81, 2")
    A("L_kloop:")
    A("s_cmp_lg_u32 s81, 7"); A("s_cbranch_scc1 L_knosw")
    A("s_mov_b32 s28, s8"); A("s_mov_b32 s29, s9"); A("s_mov_b32 s80, 0")
    A("L_knosw:")
    kbody(0, 31); kbody(1, 31)
    A("s_add_u32 s81, s81, 1"); A("s_cmp_lt_u32 s81, 8"); A("s_cbranch_scc1 L_kloop")
    stamp()
    A("v_mov_b32 v56, 0")
    A("buffer_load_dword v45, v56, s[68:71], 0 offen sc1")
    A("v_and_b32 v56, 7, v1"); A("v_lshlrev_b32 v56, 3, v56")
    A("buffer_load_dwordx2 v[62:63], v56, s[48:51], s82 offen")
    A("v_subrev_u32 v44, 4096, v44")
    A("s_waitcnt lgkmcnt(0)")
    for i in range(16): A(f"ds_read_b32 v{24+i}, v44 offset:{256*i}")
    A(f"""
    v_and_b32 v56, 3, v47
    v_lshrrev_b32 v57, 2, v47
    v_lshrrev_b32 v58, 1, v56
    v_lshlrev_b32 v58, 5, v58
    v_lshlrev_b32 v59, 3, v46
    v_add3_u32 v57, v57, v58, v59
    v_lshlrev_b32 v57, 4, v57
    v_and_b32 v56, 1, v56
    v_lshlrev_b32 v56, 3, v56
    v_add_u32 v57, v57, v56
    s_mul_i32 s14, s3, 6144
    v_add_u32 v58, s14, v57
    s_mul_i32 s14, s3, 7168
    v_add_u32 v59, s14, v57
    s_waitcnt lgkmcnt(0)
    """)
    for j in range(6):
        A(f"ds_read_b64_tr_b16 v[{192+4*j}:{193+4*j}], v58 offset:{L_GU + 1024*j}")
        A(f"ds_read_b64_tr_b16 v[{194+4*j}:{195+4*j}], v58 offset:{L_GU + 1024*j + 64}")
    for j in range(7):
        A(f"ds_read_b64_tr_b16 v[{216+4*j}:{217+4*j}], v59 offset:{L_WD + 1024*j}")
        A(f"ds_read_b64_tr_b16 v[{218+4*j}:{219+4*j}], v59 offset:{L_WD + 1024*j + 64}")
    A("v_max3_f32 v40, v24, v25, v26")
    for i in range(3, 15, 2): A(f"v_max3_f32 v40, v40, v{24+i}, v{25+i}")
    A("v_max_f32 v40, v40, v39")
    red64("v_max_f32", "v40", "v41")
    A(f"s_mov_b32 s17, {f2u(1.4426950408889634)}")
    for i in range(16):
        A(f"v_sub_f32 v{24+i}, v{24+i}, v40"); A(f"v_mul_f32 v{24+i}, s17, v{24+i}")
    for i in range(16): A(f"v_exp_f32 v{24+i}, v{24+i}")
    A("v_add_f32 v41, v24, v25")
    for i in range(2, 16): A(f"v_add_f32 v41, v41, v{24+i}")
    red64("v_add_f32", "v41", "v42")
    A(f"""
    s_lshl_b32 s14, s3, 3
    v_mov_b32 v56, s14
    ds_write_b64 v56, v[40:41] offset:{L_ST}
    s_waitcnt lgkmcnt(0)
    s_barrier
    v_mov_b32 v56, 0
    ds_read_b128 v[48:51], v56 offset:{L_ST}
    ds_read_b128 v[52:55], v56 offset:{L_ST+16}
    s_waitcnt lgkmcnt(0)
    v_max3_f32 v42, v48, v50, v52
    v_max_f32 v42, v42, v54
    """)
    for j in range(4):
        A(f"v_sub_f32 v{48+2*j}, v{48+2*j}, v42"); A(f"v_mul_f32 v{48+2*j}, s17, v{48+2*j}"); A(f"v_exp_f32 v{48+2*j}, v{48+2*j}")
    A("""
    v_mul_f32 v43, v48, v49
    v_fmac_f32 v43, v50, v51
    v_fmac_f32 v43, v52, v53
    v_fmac_f32 v43, v54, v55
    v_sub_f32 v40, v40, v42
    v_mul_f32 v40, s17, v40
    v_exp_f32 v40, v40
    v_rcp_f32 v41, v43
    """)
    A("v_fma_f32 v42, -v43, v41, 1.0"); A("v_fma_f32 v41, v42, v41, v41"); A("v_mul_f32 v40, v40, v41")
    for i in range(16): A(f"v_mul_f32 v{24+i}, v{24+i}, v40")
    for i in range(16): A(f"v_cvt_pk_bf16_f32 v{24+i}, v{24+i}, v{24+i}")
    A(f"s_lshl_b32 s14, s3, 12"); A(f"s_add_u32 s14, s14, {L_SC}")
    A("v_lshlrev_b32 v44, 3, v1"); A("v_add_u32 v44, s14, v44")
    for n in range(1, 8): A(f"ds_write_b64 v44, v[{24+2*n}:{25+2*n}] offset:{512*n}")
    A("v_mov_b32 v42, v24"); A("v_mov_b32 v43, v25")
    for r in range(4): A(f"v_mov_b32 v{12+r}, 0")
    A("s_mov_b32 s81, 0")
    A("L_vloop:")
    A("s_waitcnt lgkmcnt(0)")
    A("v_mov_b32 v40, v42"); A("v_mov_b32 v41, v43"); A("v_add_u32 v44, 512, v44")
    A("ds_read_b64 v[42:43], v44")
    buildA(0, "v40", 0)
    for st in range(2):
        for i in range(16):
            b = SETS[st] + 4 * i; ab = 16 + 4 * (i & 1)
            A("s_waitcnt vmcnt(31)")
            A(f"v_mfma_f32_16x16x32_bf16 v[12:15], v[{ab}:{ab+3}], v[{b}:{b+3}], v[12:15]")
            kv_issue(st, i)
            if i < 15: buildA((i + 1) & 1, f"v{40+st}", i + 1)
            elif st == 0: buildA(0, "v41", 0)
    A("s_add_u32 s81, s81, 1"); A("s_cmp_lt_u32 s81, 8"); A("s_cbranch_scc1 L_vloop")
    stamp()
    A(f"""
    v_lshlrev_b32 v58, 5, v47
    v_and_b32 v59, 1, v46
    v_lshlrev_b32 v59, 4, v59
    v_add_u32 v58, v58, v59
    v_mov_b32 v57, v58
    v_lshrrev_b32 v59, 1, v46
    v_lshlrev_b32 v59, 9, v59
    v_add_u32 v58, v58, v59
    s_lshl_b32 s14, s3, 10
    v_add_u32 v58, s14, v58
    ds_write_b128 v58, v[12:15] offset:{L_RED}
    v_and_b32 v59, 7, v47
    v_lshlrev_b32 v59, 2, v59
    v_add_u32 v59, v59, v46
    v_lshlrev_b32 v59, 2, v59
    s_lshl_b32 s14, s3, 7
    v_add_u32 v59, s14, v59
    s_mul_i32 s14, s3, 2560
    v_add_u32 v57, s14, v57
    s_waitcnt lgkmcnt(0)
    s_barrier
    """)
    for w in range(4): A(f"ds_read_b32 v{24+w}, v59 offset:{L_RED + 1024*w}")
    A("""
    s_waitcnt lgkmcnt(0)
    v_add_f32 v24, v24, v25
    v_add_f32 v26, v26, v27
    v_add_f32 v24, v24, v26
    v_cvt_pk_bf16_f32 v40, v24, v24
    """)
    if debug:
        A("s_lshl_b32 s14, s76, 9"); A("s_add_u32 s14, s14, 0x1100000")
        A("buffer_store_dword v24, v59, s[44:47], s14 offen")
    A("s_waitcnt vmcnt(0)")
    for t in range(8):
        buildA(t & 1, "v40", t)
        ab = 16 + 4 * (t & 1)
        for s in range(5):
            u = 5 * t + s
            A(f"v_mfma_f32_16x16x32_bf16 v[{64+4*s}:{67+4*s}], v[{ab}:{ab+3}], a[{4*u}:{4*u+3}], {'0' if t == 0 else f'v[{64+4*s}:{67+4*s}]'}")
    A("s_mov_b32 exec_hi, 0")
    for s in range(5): A(f"ds_write_b128 v57, v[{64+4*s}:{67+4*s}] offset:{L_OP + 512*s}")
    A("s_mov_b64 exec, -1")
    A("v_lshlrev_b32 v56, 4, v0")
    A("s_waitcnt vmcnt(0) lgkmcnt(0)")
    A("v_readfirstlane_b32 s14, v45")
    A("s_barrier")
    A("s_cmp_eq_u32 s14, 256"); A("s_cbranch_scc1 L_initok")
    A("s_cmp_ge_u32 s73, 27"); A("s_cbranch_scc1 L_initok")
    A("s_mov_b32 s15, 0x8000"); A("v_mov_b32 v58, 0")
    A("L_initspin:")
    A("s_sleep 2"); A("buffer_load_dword v45, v58, s[68:71], 0 offen sc1"); A("s_waitcnt vmcnt(0)")
    A("v_readfirstlane_b32 s14, v45")
    A("s_cmp_eq_u32 s14, 256"); A("s_cbranch_scc1 L_initok")
    A("s_sub_u32 s15, s15, 1"); A("s_cmp_lg_u32 s15, 0"); A("s_cbranch_scc1 L_initspin")
    A("L_initok:")
    A("s_cmp_eq_u32 s3, 3"); A("s_cbranch_scc1 L_reducer")
    for w in range(4): A(f"ds_read_b128 v[{24+4*w}:{27+4*w}], v56 offset:{L_OP + 2560*w}")
    A("s_mul_i32 s14, s76, 2560"); A(f"v_mov_b32 v58, {OOB}"); A("v_cmp_gt_u32 vcc, 160, v0"); A("v_cndmask_b32 v56, v58, v56, vcc")
    A("s_waitcnt lgkmcnt(0)")
    for r in range(4):
        A(f"v_add_f32 v{24+r}, v{24+r}, v{28+r}"); A(f"v_add_f32 v{32+r}, v{32+r}, v{36+r}")
    for r in range(4): A(f"v_add_f32 v{24+r}, v{24+r}, v{32+r}")
    for r in range(4): A(f"v_min_u32 v{24+r}, -2, v{24+r}")
    A("buffer_store_dwordx4 v[24:27], v56, s[44:47], s14 offen sc1")
    A("s_branch L_ffn")
    A("L_reducer:")
    A("s_cmp_ge_u32 s73, 20"); A("s_cbranch_scc1 L_ffn")
    A(f"""
    v_lshrrev_b32 v56, 3, v1
    v_mul_u32_u24 v56, 2560, v56
    v_and_b32 v57, 7, v1
    v_lshlrev_b32 v58, 4, v57
    v_add_u32 v56, v56, v58
    s_mul_i32 s14, s72, {32*2560}
    s_lshl_b32 s15, s73, 7
    s_add_u32 s14, s14, s15
    s_add_u32 s15, s14, {8*2560}
    s_add_u32 s17, s14, {16*2560}
    s_add_u32 s19, s14, {24*2560}
    s_mov_b32 s20, 0x8000
    L_rpoll:
    buffer_load_dwordx4 v[64:67], v56, s[44:47], s14 offen sc1
    buffer_load_dwordx4 v[68:71], v56, s[44:47], s15 offen sc1
    buffer_load_dwordx4 v[72:75], v56, s[44:47], s17 offen sc1
    buffer_load_dwordx4 v[76:79], v56, s[44:47], s19 offen sc1
    s_waitcnt vmcnt(0)
    """)
    def sentinel(regs, m, lab_ok, lab_poll, cnt):
        A(f"v_max3_u32 {m}, v{regs[0]}, v{regs[1]}, v{regs[2]}")
        rest = regs[3:]
        while len(rest) >= 2:
            A(f"v_max3_u32 {m}, {m}, v{rest[0]}, v{rest[1]}"); rest = rest[2:]
        if rest: A(f"v_max_u32 {m}, {m}, v{rest[0]}")
        A(f"v_cmp_eq_u32 vcc, -1, {m}")
        A(f"s_cbranch_vccz {lab_ok}")
        if sleep: A(f"s_sleep {sleep}")
        A(f"s_sub_u32 {cnt}, {cnt}, 1"); A(f"s_cmp_lg_u32 {cnt}, 0"); A(f"s_cbranch_scc1 {lab_poll}")
        A(f"{lab_ok}:")
    sentinel(list(range(64, 80)), "v58", "L_rok", "L_rpoll", "s20")
    for r in range(4):
        A(f"v_add_f32 v{64+r}, v{64+r}, v{68+r}"); A(f"v_add_f32 v{72+r}, v{72+r}, v{76+r}")
    for r in range(4): A(f"v_add_f32 v{64+r}, v{64+r}, v{72+r}")
    red_hi("v_add_f32", [f"v{64+r}" for r in range(4)], [f"v{68+r}" for r in range(4)])
    A("""
    v_cvt_pk_bf16_f32 v68, v64, v65
    v_cvt_pk_bf16_f32 v69, v66, v67
    v_lshlrev_b32 v64, 16, v68
    v_and_b32 v65, 0xffff0000, v68
    v_lshlrev_b32 v66, 16, v69
    v_and_b32 v67, 0xffff0000, v69
    v_lshlrev_b32 v70, 16, v62
    v_and_b32 v71, 0xffff0000, v62
    v_lshlrev_b32 v72, 16, v63
    v_and_b32 v73, 0xffff0000, v63
    v_add_f32 v64, v64, v70
    v_add_f32 v65, v65, v71
    v_add_f32 v66, v66, v72
    v_add_f32 v67, v67, v73
    v_cvt_pk_bf16_f32 v68, v64, v65
    v_cvt_pk_bf16_f32 v69, v66, v67
    v_min_u32 v68, -2, v68
    v_min_u32 v69, -2, v69
    v_lshlrev_b32 v57, 3, v57
    """)
    A(f"s_add_u32 s14, s82, {HOFF}")
    A("s_mov_b64 exec, 0xff")
    A("buffer_store_dwordx2 v[68:69], v57, s[44:47], s14 offen sc1")
    A("s_mov_b64 exec, -1")
    A("L_ffn:")
    stamp()
    A("s_cmp_ge_u32 s73, 27"); A("s_cbranch_scc1 L_fin")
    A(f"""
    v_and_b32 v56, 7, v47
    v_mul_u32_u24 v57, 1280, v56
    v_lshrrev_b32 v58, 3, v47
    v_lshlrev_b32 v58, 6, v58
    v_lshlrev_b32 v59, 4, v46
    v_add3_u32 v57, v57, v58, v59
    s_lshl_b32 s14, s3, 7
    s_add_u32 s14, s14, {HOFF}
    s_add_u32 s15, s14, 1024
    s_cmp_lt_u32 s3, 2
    s_cselect_b32 s15, s15, {OOB}
    s_cselect_b32 s17, 1.0, 0
    s_mov_b32 s19, {f2u(1/128)}
    s_cselect_b32 s19, {f2u(1/192)}, s19
    s_mov_b32 s20, 0x8000
    L_hpoll:
    buffer_load_dwordx4 v[64:67], v57, s[44:47], s14 offen sc1
    buffer_load_dwordx4 v[68:71], v57, s[44:47], s14 offen offset:512 sc1
    buffer_load_dwordx4 v[72:75], v57, s[44:47], s15 offen sc1
    s_waitcnt vmcnt(0)
    """)
    sentinel(list(range(64, 76)), "v58", "L_hok", "L_hpoll", "s20")
    stamp()
    A(f"""
    v_lshrrev_b32 v60, 3, v1
    v_mul_u32_u24 v60, 1280, v60
    v_and_b32 v61, 7, v1
    v_lshl_add_u32 v60, v61, 1, v60
    s_lshl_b32 s21, s18, 4
    s_add_u32 s22, s21, {HOFF}
    """)
    for j in range(12):
        A(f"v_lshlrev_b32 v{80+2*j}, 16, v{64+j}"); A(f"v_and_b32 v{81+2*j}, 0xffff0000, v{64+j}")
    A("v_add_f32 v24, v80, v81"); A("v_add_f32 v25, v82, v83")
    for j in range(4, 24, 2):
        A(f"v_add_f32 v24, v24, v{80+j}"); A(f"v_add_f32 v25, v25, v{81+j}")
    A("v_add_f32 v24, v24, v25")
    red_hi("v_add_f32", ["v24"], ["v26"])
    A("v_mul_f32 v27, s19, v24")
    A("v_mov_b32 v25, 0"); A("v_mov_b32 v28, 0")
    for j in range(24):
        acc = "v25" if j < 16 else "v28"
        A(f"v_sub_f32 v{29+(j&1)}, v{80+j}, v27"); A(f"v_fmac_f32 {acc}, v{29+(j&1)}, v{29+(j&1)}")
    A("v_fmac_f32 v25, s17, v28")
    red_hi("v_add_f32", ["v25"], ["v26"])
    A(f"""
    v_lshlrev_b32 v56, 5, v56
    s_lshl_b32 s14, s3, 3
    v_add_u32 v58, s14, v56
    s_mov_b64 exec, 0xff
    ds_write_b64 v58, v[24:25] offset:{L_ST + 64}
    s_mov_b64 exec, -1
    s_waitcnt lgkmcnt(0)
    s_barrier
    buffer_load_ushort v45, v60, s[44:47], s22 offen sc1
    ds_read_b128 v[28:31], v56 offset:{L_ST + 64}
    ds_read_b128 v[32:35], v56 offset:{L_ST + 80}
    s_waitcnt lgkmcnt(0)
    v_add_f32 v24, v28, v30
    v_add_f32 v25, v32, v34
    v_add_f32 v24, v24, v25
    v_mul_f32 v24, {f2u(1/640)}, v24
    v_add_f32 v25, v29, v31
    v_add_f32 v26, v33, v35
    v_add_f32 v25, v25, v26
    v_mul_f32 v28, {f2u(1/192)}, v28
    v_mul_f32 v30, {f2u(1/192)}, v30
    v_mul_f32 v32, {f2u(1/128)}, v32
    v_mul_f32 v34, {f2u(1/128)}, v34
    v_sub_f32 v28, v28, v24
    v_sub_f32 v30, v30, v24
    v_sub_f32 v32, v32, v24
    v_sub_f32 v34, v34, v24
    v_mul_f32 v28, v28, v28
    v_fmac_f32 v28, v30, v30
    v_mul_f32 v32, v32, v32
    v_fmac_f32 v32, v34, v34
    v_mul_f32 v28, {f2u(192.0)}, v28
    v_mul_f32 v32, {f2u(128.0)}, v32
    v_add_f32 v25, v25, v28
    v_add_f32 v25, v25, v32
    v_mul_f32 v25, {f2u(1/640)}, v25
    """)
    ln_consts("v24", "v25", "v27", "v26")
    for j in range(12):
        a, b = f"v{80+2*j}", f"v{81+2*j}"
        A(f"v_sub_f32 {a}, {a}, v24"); A(f"v_sub_f32 {b}, {b}, v24")
        A(f"v_cvt_pk_bf16_f32 v28, {a}, {b}")
        A(f"v_lshlrev_b32 {a}, 16, v28"); A(f"v_and_b32 {b}, 0xffff0000, v28")
        A(f"v_mul_f32 v29, {a}, v27"); A(f"v_mul_f32 v30, {b}, v27")
        A(f"v_fma_f32 {a}, -v29, v25, {a}"); A(f"v_fma_f32 {b}, -v30, v25, {b}")
        A(f"v_fma_f32 v29, {a}, v27, v29"); A(f"v_fma_f32 v30, {b}, v27, v30")
        A(f"v_cvt_pk_bf16_f32 v{64+j}, v29, v30")
    for i in range(3):
        for mtx in range(2):
            d = 32 + 4 * mtx; bb = 192 + 4 * (2 * i + mtx)
            A(f"v_mfma_f32_16x16x32_bf16 v[{d}:{d+3}], v[{64+4*i}:{67+4*i}], v[{bb}:{bb+3}], {'0' if i == 0 else f'v[{d}:{d+3}]'}")
    A(f"""
    v_lshrrev_b32 v56, 1, v46
    v_lshrrev_b32 v57, 3, v47
    v_cmp_eq_u32 vcc, v56, v57
    v_lshlrev_b32 v56, 8, v56
    v_and_b32 v57, 7, v47
    v_lshlrev_b32 v57, 5, v57
    v_and_b32 v58, 1, v46
    v_lshlrev_b32 v58, 4, v58
    v_add3_u32 v56, v56, v57, v58
    s_lshl_b32 s14, s3, 9
    v_add_u32 v56, s14, v56
    v_lshlrev_b32 v57, 4, v1
    v_add_u32 v57, {L_JUNK - L_GR - 2048}, v57
    v_cndmask_b32 v59, v57, v56, vcc
    v_add_u32 v57, 2048, v57
    v_cndmask_b32 v56, v57, v56, vcc
    ds_write_b128 v56, v[32:35] offset:{L_GR}
    ds_write_b128 v59, v[36:39] offset:{L_GR + 2048}
    v_lshlrev_b32 v58, 5, v61
    v_lshrrev_b32 v57, 3, v1
    v_lshl_add_u32 v58, v57, 2, v58
    s_waitcnt lgkmcnt(0)
    s_barrier
    """)
    A("s_cmp_lg_u32 s3, 0"); A("s_cbranch_scc1 L_down")
    for p in range(16): A(f"ds_read_b32 v{64+p}, v58 offset:{L_GR + 256*p}")
    A("s_waitcnt lgkmcnt(0)")
    for base in (64, 72):
        for p in range(4): A(f"v_add_f32 v{base+p}, v{base+p}, v{base+4+p}")
        A(f"v_add_f32 v{base}, v{base}, v{base+1}"); A(f"v_add_f32 v{base+2}, v{base+2}, v{base+3}"); A(f"v_add_f32 v{base}, v{base}, v{base+2}")
    rbf("v64", "v65"); rbf("v72", "v73")
    c0 = -2.0 * 0.7978845608028654 * 1.4426950408889634
    A(f"""
    v_mul_f32 v65, v64, v64
    v_mul_f32 v65, {f2u(0.044715)}, v65
    v_fma_f32 v65, v65, v64, v64
    v_mul_f32 v65, {f2u(c0)}, v65
    v_exp_f32 v65, v65
    v_add_f32 v65, 1.0, v65
    v_rcp_f32 v65, v65
    v_mul_f32 v64, v64, v65
    """)
    rbf("v64", "v66")
    A("""
    v_mul_f32 v64, v64, v72
    v_mov_b32_dpp v65, v64 quad_perm:[1,0,3,2] row_mask:0xf bank_mask:0xf
    v_cvt_pk_bf16_f32 v66, v64, v65
    v_min_u32 v66, -2, v66
    v_lshlrev_b32 v57, 1, v1
    s_lshl_b32 s14, s83, 7
    s_mov_b32 exec_lo, 0x55555555
    s_mov_b32 exec_hi, 0x55555555
    buffer_store_dword v66, v57, s[32:35], s14 offen sc1
    s_mov_b64 exec, -1
    """)
    A("L_down:")
    stamp()
    A("s_cmp_ge_u32 s73, 10"); A("s_cbranch_scc1 L_fin")
    A(f"""
    v_lshrrev_b32 v57, 3, v47
    v_lshlrev_b32 v57, 9, v57
    v_lshlrev_b32 v59, 7, v46
    v_and_b32 v62, 7, v47
    v_lshlrev_b32 v62, 4, v62
    v_add3_u32 v57, v57, v59, v62
    s_lshl_b32 s14, s3, 10
    v_add_u32 v57, s14, v57
    s_mov_b32 s20, 0x8000
    L_apoll:
    """)
    for i in range(7):
        A(f"s_mov_b32 s14, {4096*i}")
        A(f"buffer_load_dwordx4 v[{64+4*i}:{67+4*i}], v57, s[32:35], s14 offen sc1")
    A("s_waitcnt vmcnt(0)")
    sentinel(list(range(64, 92)), "v59", "L_aok", "L_apoll", "s20")
    stamp()
    for i in range(7):
        A(f"v_mfma_f32_16x16x32_bf16 v[32:35], v[{64+4*i}:{67+4*i}], v[{216+4*i}:{219+4*i}], {'0' if i == 0 else 'v[32:35]'}")
    A(f"ds_write_b128 v56, v[32:35] offset:{L_GR}")
    A("s_waitcnt lgkmcnt(0)"); A("s_barrier")
    A("s_cmp_lg_u32 s3, 0"); A("s_cbranch_scc1 L_fin")
    for p in range(8): A(f"ds_read_b32 v{64+p}, v58 offset:{L_GR + 256*p}")
    A("s_waitcnt lgkmcnt(0)")
    for p in range(4): A(f"v_add_f32 v{64+p}, v{64+p}, v{68+p}")
    A("v_add_f32 v64, v64, v65"); A("v_add_f32 v66, v66, v67"); A("v_add_f32 v64, v64, v66")
    rbf("v64", "v65")
    A("""
    v_lshlrev_b32 v45, 16, v45
    v_add_f32 v64, v64, v45
    v_mov_b32_dpp v65, v64 quad_perm:[1,0,3,2] row_mask:0xf bank_mask:0xf
    v_cvt_pk_bf16_f32 v66, v64, v65
    s_mov_b32 exec_lo, 0x55555555
    s_mov_b32 exec_hi, 0x55555555
    buffer_store_dword v66, v60, s[64:67], s21 offen
    s_mov_b64 exec, -1
    """)
    A("L_fin:")
    if stamps:
        stamp()
        A("s_waitcnt lgkmcnt(0)")
        A("s_lshl_b32 s14, s2, 2"); A("s_add_u32 s14, s14, s3"); A("s_lshl_b32 s14, s14, 7"); A("s_add_u32 s14, s14, 0x3000000")
        A("v_mov_b32 v3, 0"); A("s_mov_b64 exec, 1")
        for i in range(ns[0]):
            A(f"v_mov_b32 v8, s{84+2*i}"); A(f"v_mov_b32 v9, s{85+2*i}")
            A(f"buffer_store_dwordx2 v[8:9], v3, s[44:47], s14 offen offset:{8*i}")
    A("L_end:"); A("s_endpgm")
    A('.section .rodata,"a"'); A(".p2align 6"); A(f".amdhsa_kernel {KN}")
    for l in ("next_free_vgpr 416", "next_free_sgpr 102", "accum_offset 256", "group_segment_fixed_size 0", "kernarg_size 96",
              "user_sgpr_count 2", "user_sgpr_kernarg_segment_ptr 1", "system_sgpr_workgroup_id_x 1", "float_denorm_mode_32 3"):
        A(f".amdhsa_{l}")
    A(".end_amdhsa_kernel")
    return A.render()

if __name__ == "__main__":
    out = sys.argv[1]
    kw = {}
    for kv in sys.argv[2:]:
        k, v = kv.split("=")
        kw[k] = v.replace("+", " ") if k.endswith("pol") else int(v)
    open(out, "w").write(gen(**kw))
```

```python
import sys, struct
from asmlib import Asm
KN = "sequential_preLN__mha_block_cached__geglu_ffn__decode_kernel"

SLAB = 0x000000
HOFF = 0x0A0000
ACT  = 0x0A4000
QOFF = 0x100000
WSN  = 0x180000
OOB  = 0x7F000000
L_RED = 0x0000
L_SC  = 0x1000
L_ST  = 0x5000
L_OP  = 0x5400
L_W   = 0x8000
L_GR  = 0x1000
LDS_SIZE = 0x8000 + 81920

def f2u(x): return "0x%08x" % struct.unpack("<I", struct.pack("<f", x))[0]

class VM:
    def __init__(s, A): s.A = A; s.q = []
    def issue(s, tag, text): s.A(text); s.q.append(tag)
    def wait(s, tag):
        if tag not in s.q: return
        i = len(s.q) - 1 - s.q[::-1].index(tag)
        n = len(s.q) - 1 - i
        assert n <= 63
        s.A(f"s_waitcnt vmcnt({n})"); s.q = s.q[i + 1:]
    def has(s, tag): return tag in s.q
    def count(s, tag):
        if tag not in s.q: return None
        i = len(s.q) - 1 - s.q[::-1].index(tag)
        return len(s.q) - 1 - i

def add_pads(txt, spacing):
    import subprocess, re
    lines = txt.split("\n")
    b = lines.index(";TAILBEGIN"); e = lines.index(";TAILEND")
    body = lines[b + 1:e]
    ins = [l for l in body if l.startswith("    ")]
    src = "\n".join(lines)
    open("pad.s", "w").write(src.replace("s_branch L_pad0", "s_branch L_padend"))
    r = subprocess.run(["llvm-mc", "-triple=amdgcn-amd-amdhsa", "-mcpu=gfx950", "-show-encoding", "pad.s"], capture_output=True, text=True)
    assert r.returncode == 0, r.stderr
    enc = [m.group(1).count(",") + 1 for m in re.finditer(r"; encoding: \[(.*?)\]", r.stdout)]
    allins = [i for i, l in enumerate(lines) if l.startswith("    ") and not l.strip().startswith(".")]
    assert len(enc) == len(allins), (len(enc), len(allins))
    size = dict(zip(allins, enc))
    out = lines[:b + 1]; acc = spacing; n = 0
    for i in range(b + 1, e):
        if i in size:
            if acc + size[i] > spacing:
                out.append(f"L_pad{n}:"); out.append(f"    s_cbranch_execz L_pad{n+1}"); n += 1; acc = 4
            acc += size[i]
        out.append(lines[i])
    out.append(f"L_pad{n}:"); out.append("    s_cbranch_execz L_padend")
    out += lines[e:]
    return "\n".join(out)

def gen(debug=0, stamps=0, wpol="nt", kvpol="nt", cpol="sc1 nt", ppol="sc1", lpol="sc1", qpol="sc1 nt", fpol="sc1", sleep=1,
        D=6, D0=6, DW=8, DS=(5, 6, 7, 8), TS=(-100, 0, 100), RT=226, T0=400, I0=62, JC=50, CJ=40, E=5, nowo=0, noffn=0,
        qsleep=8, NS=5, G=45, ctl=1, XK=2, GS=(3, 6), BD=0, BF=0, RV=0, TX=0, LK=0, LC=100, FI=4, DI=2, warm=0, WI=10, WW=3, FS=8):
    A = Asm(); vm = VM(A)
    DH = DS[-1]
    ns = [0]
    def stamp(level=1):
        if stamps & level:
            i = ns[0]; ns[0] += 1
            A(f"s_memrealtime s[{84+2*i}:{85+2*i}]")
    def tl(idx):
        if stamps & 4:
            A("s_memrealtime s[86:87]"); A("s_waitcnt lgkmcnt(0)"); A(f"v_writelane_b32 v61, s86, {idx}")
    def rbf(v, t):
        A(f"v_cvt_pk_bf16_f32 {t}, {v}, {v}"); A(f"v_lshlrev_b32 {v}, 16, {t}")
    def red_sw(op, regs, tmps):
        for sw in ("v_permlane16_swap_b32", "v_permlane32_swap_b32"):
            for v, t in zip(regs, tmps): A(f"v_mov_b32 {t}, {v}")
            for v, t in zip(regs, tmps): A(f"{sw} {v}, {t}")
            for v, t in zip(regs, tmps): A(f"{op} {v}, {v}, {t}")
    def red_hi(op, regs, tmps):
        for v in regs: A(f"{op}_dpp {v}, {v}, {v} row_ror:8 row_mask:0xf bank_mask:0xf")
        red_sw(op, regs, tmps)
    def red64(op, v, t):
        A(f"{op}_dpp {v}, {v}, {v} quad_perm:[1,0,3,2] row_mask:0xf bank_mask:0xf")
        A(f"{op}_dpp {v}, {v}, {v} quad_perm:[2,3,0,1] row_mask:0xf bank_mask:0xf")
        A(f"{op}_dpp {v}, {v}, {v} row_half_mirror row_mask:0xf bank_mask:0xf")
        red_hi(op, [v], [t])
    def srd(d, lo, hi, n):
        A(f"s_mov_b32 s{d}, {lo}"); A(f"s_mov_b32 s{d+1}, {hi}"); A(f"s_mov_b32 s{d+2}, {n}"); A(f"s_mov_b32 s{d+3}, 0x20000")
    def buildA(aset, src, u):
        b = 16 + 4 * aset
        for r in range(4): A(f"v_and_b32_dpp v{b+r}, {src}, v{4+r} row_newbcast:{u} row_mask:0xf bank_mask:0xf")
    def slot(j): return 64 + 4 * j
    def sreg(sl): return f"v[{slot(sl)}:{slot(sl)+3}]" if sl < 48 else f"a[{4*(sl-48)}:{4*(sl-48)+3}]"
    def kv_text(sl, j): return f"buffer_load_dwordx4 {sreg(sl)}, v2, s[28:31], s80 offen offset:{(j&3)*1024} {kvpol}"
    kvn = [0]
    def kv_next(pref="K"):
        j = kvn[0]; kvn[0] += 1
        sl = j if (pref == "K" and j < 16 * NS) else j % 16
        vm.issue(f"{pref}{j}", kv_text(sl, j))
        if j & 3 == 3: A("s_add_u32 s80, s80, 16384")
        if pref == "K" and j in hooks: hooks[j]()
    hooks = {}
    cur = [D]
    def paced():
        j = kvn[0]
        vm.wait(f"K{j-cur[0]}")
        kv_next()
    gap = [0]
    def pace(lines, lim=999):
        for l in lines:
            A(l); gap[0] += 1
            if gap[0] >= G and kvn[0] < lim: paced(); gap[0] = 0
    def ln_consts(m, v, rc, t):
        rbf(m, t); rbf(v, t)
        A(f"v_add_f32 {v}, {f2u(1e-5)}, {v}"); rbf(v, t)
        A(f"v_sqrt_f32 {v}, {v}"); rbf(v, t)
        A(f"v_rcp_f32 {rc}, {v}")
    def interleave(lines, extras):
        n = len(lines); k = len(extras); done = 0
        for i, l in enumerate(lines):
            A(l)
            while done < k and (i + 1) * (k + 1) >= (done + 1) * n:
                extras[done](); done += 1
        while done < k: extras[done](); done += 1
    def capture(fn):
        save = A.lines; A.lines = []; fn(); out = A.lines; A.lines = save; return out
    def sentinel(regs, m):
        A(f"v_max3_u32 {m}, v{regs[0]}, v{regs[1]}, v{regs[2]}")
        rest = regs[3:]
        while len(rest) >= 2:
            A(f"v_max3_u32 {m}, {m}, v{rest[0]}, v{rest[1]}"); rest = rest[2:]
        if rest: A(f"v_max_u32 {m}, {m}, v{rest[0]}")
        A(f"v_cmp_eq_u32 vcc, -1, {m}")
    def retry(cnt, lab, sl=None):
        sl = sleep if sl is None else sl
        if sl: A(f"s_sleep {sl}")
        A(f"s_sub_u32 {cnt}, {cnt}, 1"); A(f"s_cmp_lg_u32 {cnt}, 0"); A(f"s_cbranch_scc1 {lab}")
    def unpack(U, P, n):
        for j in range(n):
            A(f"v_lshlrev_b32 v{U+2*j}, 16, v{P+j}"); A(f"v_and_b32 v{U+2*j+1}, 0xffff0000, v{P+j}")
    def norm(U, O, n):
        for j in range(n):
            u = U + 2 * j
            A(f"v_pk_add_f32 v[{u}:{u+1}], v[{u}:{u+1}], v[28:29]")
        for j in range(n):
            u = U + 2 * j
            A(f"v_cvt_pk_bf16_f32 v{O+j}, v{u}, v{u+1}")
        unpack(U, O, n)
        for j in range(n):
            u = U + 2 * j
            A(f"v_pk_mul_f32 v[{u}:{u+1}], v[{u}:{u+1}], v[26:27]")
        for j in range(n):
            u = U + 2 * j
            A(f"v_cvt_pk_bf16_f32 v{O+j}, v{u}, v{u+1}")

    A(f"; @launch grid=(256,1,1) block=(256,1,1) lds={LDS_SIZE}")
    A('.amdgcn_target "amdgcn-amd-amdhsa--gfx950"')
    A(".text"); A(f".globl {KN}"); A(".p2align 8"); A(f".type {KN},@function"); A(f"{KN}:")
    A("s_cmp_ge_u32 s2, 256"); A("s_cbranch_scc1 L_end")
    A("s_load_dwordx16 s[4:19], s[0:1], 0")
    A("s_load_dwordx8 s[20:27], s[0:1], 64")
    stamp(3)
    if ctl: A("s_memrealtime s[100:101]")
    A(f"""
    v_and_b32 v1, 63, v0
    v_lshrrev_b32 v45, 6, v0
    v_lshrrev_b32 v46, 4, v1
    v_and_b32 v47, 15, v1
    v_readfirstlane_b32 s3, v45
    s_and_b32 s72, s2, 7
    s_lshr_b32 s73, s2, 3
    s_and_b32 s74, s73, 3
    s_lshl_b32 s75, s72, 2
    s_add_u32 s74, s74, s75
    s_lshr_b32 s75, s73, 2
    s_lshl_b32 s76, s75, 5
    s_add_u32 s76, s76, s74
    s_lshl_b32 s78, s3, 12
    v_lshlrev_b32 v2, 4, v1
    v_add_u32 v2, s78, v2
    s_lshl_b32 s78, s76, 20
    s_lshr_b32 s79, s76, 12
    s_mov_b32 s80, 0
    s_mov_b32 s30, 0x100000
    s_mov_b32 s31, 0x20000
    v_and_b32 v62, 7, v47
    v_mul_u32_u24 v3, 1280, v62
    v_lshrrev_b32 v56, 3, v1
    v_lshl_add_u32 v57, v56, 4, v3
    v_lshl_add_u32 v3, v46, 4, v3
    s_and_b32 s77, s75, 3
    s_waitcnt lgkmcnt(0)
    s_add_u32 s28, s6, s78
    s_addc_u32 s29, s7, s79
    """)
    srd(48, "s4", "s5", 10240)
    if stamps & 4: A("v_mov_b32 v61, 0"); A("v_writelane_b32 v61, s100, 63")
    A("s_cmp_lg_u32 s3, 0"); A("s_cbranch_scc1 L_w123")

    def setup():
        srd(44, "s26", "s27", "0x40000000" if (debug or stamps) else WSN)
        A("s_add_u32 s8, s8, s78"); A("s_addc_u32 s9, s9, s79")
        srd(40, "s12", "s13", 4096 * 1280)
        srd(64, "s22", "s23", 10240)
        srd(68, "s24", "s25", 256)
        A(f"""
        s_lshr_b32 s14, s73, 1
        s_lshl_b32 s14, s14, 3
        s_add_u32 s14, s14, s72
        s_cmp_lt_u32 s14, 27
        s_cselect_b32 s15, 1, 0
        s_cselect_b32 s52, s16, s20
        s_cselect_b32 s53, s17, s21
        s_mov_b32 s56, s18
        s_mov_b32 s57, s19
        s_mov_b32 s54, {640 * 3456}
        s_mov_b32 s55, 0x20000
        s_mov_b32 s58, {640 * 3456}
        s_mov_b32 s59, 0x20000
        s_lshl_b32 s14, s14, 1
        s_and_b32 s81, s73, 1
        s_add_u32 s18, s14, s81
        s_sub_u32 s81, s73, 8
        s_cmp_lt_u32 s81, 5
        s_cselect_b32 s15, 2, s15
        s_lshl_b32 s81, s81, 2
        s_add_u32 s81, s81, s3
        s_lshl_b32 s81, s81, 6
        s_mul_i32 s20, s72, 1280
        s_add_u32 s20, s20, s81
        s_cmp_eq_u32 s15, 2
        s_cselect_b32 s20, s20, {OOB}
        s_lshl_b32 s14, s72, 2
        s_and_b32 s81, s73, 3
        s_add_u32 s14, s14, s81
        s_add_u32 s81, s14, 32
        s_cmp_ge_u32 s73, 28
        s_cselect_b32 s14, s14, s81
        s_cmp_ge_u32 s73, 24
        s_cselect_b32 s14, s14, 64
        s_cmp_lt_u32 s14, 40
        s_cselect_b32 s15, 3, s15
        s_cselect_b32 s18, s14, s18
        s_mov_b32 s19, s15
        s_add_u32 s32, s26, {ACT}
        s_addc_u32 s33, s27, 0
        s_mov_b32 s34, {216*128}
        s_mov_b32 s35, 0x20000
        s_mov_b32 s10, 0xcccccccc
        s_mov_b32 s11, 0xcccccccc
        s_mov_b32 s12, 0xaaaaaaaa
        s_mov_b32 s13, 0xaaaaaaaa
        v_and_b32 v58, 1, v47
        v_lshlrev_b32 v58, 4, v58
        v_mov_b32 v59, 0xffff
        v_lshlrev_b32 v58, v58, v59
        v_lshrrev_b32 v59, 1, v47
        """)
        assert 640 * 3456 == 1728 * 1280
        for r in range(4):
            A(f"v_cmp_eq_u32 vcc, {r}, v59"); A(f"v_cndmask_b32 v{4+r}, 0, v58, vcc")
        A(f"""
        s_lshl_b32 s14, s74, 7
        s_lshl_b32 s15, s3, 5
        s_add_u32 s14, s14, s15
        v_add_u32 v60, s14, v46
        v_mul_u32_u24 v60, 1280, v60
        v_lshl_add_u32 v60, v47, 4, v60
        v_lshlrev_b32 v63, 9, v46
        v_lshl_add_u32 v63, v47, 5, v63
        s_lshl_b32 s22, s74, 3
        s_add_u32 s21, s22, s75
        s_lshl_b32 s21, s21, 11
        s_add_u32 s21, s21, {QOFF}
        s_lshl_b32 s14, s3, 12
        s_add_u32 s14, s14, {L_SC}
        v_lshlrev_b32 v44, 2, v1
        v_add_u32 v44, s14, v44
        s_mov_b32 s16, {f2u(128 ** -0.5)}
        """)

    XS, XA, W0, U0 = 216, 196, 216, 216
    cur[0] = D0
    for _ in range(XK): kv_next()
    for i in range(10): vm.issue(f"xs{i}", f"buffer_load_dwordx4 v[{XS+4*i}:{XS+4*i+3}], v57, s[48:51], 0 offen offset:{128*i}")
    A("s_mul_i32 s14, s77, 320")
    for i in range(5): vm.issue(f"xa{i}", f"buffer_load_dwordx4 v[{XA+4*i}:{XA+4*i+3}], v3, s[48:51], s14 offen offset:{64*i}")
    srd(36, "s10", "s11", 640 * 8192)
    A(f"""
    v_lshrrev_b32 v50, 3, v1
    v_and_b32 v50, 2, v50
    v_and_b32 v51, 7, v1
    v_xor_b32 v50, v50, v51
    v_lshlrev_b32 v50, 4, v50
    v_lshl_add_u32 v48, v56, 13, v50
    s_lshl_b32 s14, s74, 8
    s_lshr_b32 s15, s75, 2
    s_lshl_b32 s15, s15, 7
    s_add_u32 s14, s14, s15
    v_add_u32 v48, s14, v48
    v_xor_b32 v49, 64, v48
    s_mul_i32 s82, s77, {160*8192}
    s_mov_b32 s83, {L_W}
    """)
    dn = [0]
    def wq_dma():
        i = dn[0]; dn[0] += 1
        A("s_mov_b32 m0, s83"); A("s_add_u32 s83, s83, 1024")
        vm.issue(f"dq{i}", f"buffer_load_dwordx4 v{48 + (i & 1)}, s[36:39], s82 offen {wpol} lds")
        A("s_add_u32 s82, s82, 65536")
    while kvn[0] < D0:
        for _ in range(4): wq_dma()
        kv_next()
    while dn[0] < 20: wq_dma()
    setup()
    vm.wait("xs9")
    stamp(2)
    LIM = 33
    def stats():
        A("s_mov_b32 s14, 0x3f803f80")
        A(f"v_dot2_f32_bf16 v24, v{XS}, s14, 0"); A(f"v_dot2_f32_bf16 v25, v{XS+1}, s14, 0")
        for j in range(2, 40): A(f"v_dot2_f32_bf16 v{24+(j&1)}, v{XS+j}, s14, v{24+(j&1)}")
        A("v_add_f32 v24, v24, v25")
        red_hi("v_add_f32", ["v24"], ["v26"])
        A(f"v_mul_f32 v28, {f2u(-1/640)}, v24"); A("v_mov_b32 v29, v28")
        for r in range(30, 34): A(f"v_mov_b32 v{r}, 0")
        for j in range(40):
            t = 34 + 2 * (j & 3); a = 30 + 2 * (j & 1)
            A(f"v_lshlrev_b32 v{t}, 16, v{XS+j}"); A(f"v_and_b32 v{t+1}, 0xffff0000, v{XS+j}")
            A(f"v_pk_add_f32 v[{t}:{t+1}], v[{t}:{t+1}], v[28:29]")
            A(f"v_pk_fma_f32 v[{a}:{a+1}], v[{t}:{t+1}], v[{t}:{t+1}], v[{a}:{a+1}]")
        A("v_pk_add_f32 v[30:31], v[30:31], v[32:33]"); A("v_add_f32 v25, v30, v31")
        red_hi("v_add_f32", ["v25"], ["v26"])
        A(f"v_mul_f32 v24, {f2u(1/640)}, v24"); A(f"v_mul_f32 v25, {f2u(1/640)}, v25")
        ln_consts("v24", "v25", "v26", "v27")
        A("v_sub_f32 v28, 0, v24"); A("v_sub_f32 v29, 0, v24"); A("v_mov_b32 v27, v26")
    pace(capture(stats), LIM)
    vm.wait("xa4")
    def part2():
        unpack(U0, XA, 20); norm(U0, XA, 20)
        A(f"""
        v_lshrrev_b32 v50, 2, v47
        v_lshl_add_u32 v50, v46, 3, v50
        v_lshlrev_b32 v50, 7, v50
        v_and_b32 v51, 3, v47
        v_lshl_add_u32 v50, v51, 3, v50
        v_lshrrev_b32 v51, 3, v47
        v_and_b32 v52, 1, v46
        v_lshl_add_u32 v51, v52, 1, v51
        v_lshl_add_u32 v50, v51, 5, v50
        v_xor_b32 v51, 32, v50
        v_xor_b32 v52, 64, v50
        v_xor_b32 v53, 96, v50
        """)
    pace(capture(part2), LIM)
    stamp(2)
    while vm.has("dq19"): paced()
    stamp(2)
    for half in range(2):
        for i in range(5):
            for t in range(2):
                b = W0 + 8 * i + 4 * t
                A(f"ds_read_b64_tr_b16 v[{b}:{b+1}], v{50+2*half+t} offset:{L_W + 4096*i}")
                A(f"ds_read_b64_tr_b16 v[{b+2}:{b+3}], v{50+2*half+t} offset:{L_W + 4096*i + 512}")
        if kvn[0] < LIM: paced()
        A("s_waitcnt lgkmcnt(0)")
        for i in range(5):
            for t in range(2):
                b = W0 + 8 * i + 4 * t; d = 24 + 8 * half + 4 * t
                A(f"v_mfma_f32_16x16x32_bf16 v[{d}:{d+3}], v[{b}:{b+3}], v[{XA+4*i}:{XA+4*i+3}], {'0' if i == 0 else f'v[{d}:{d+3}]'}")
        if kvn[0] < LIM: paced()
    assert kvn[0] <= LIM
    A(f"""
    v_lshlrev_b32 v50, 11, v62
    v_lshrrev_b32 v51, 3, v47
    v_lshl_add_u32 v50, v51, 6, v50
    v_lshl_add_u32 v50, v46, 4, v50
    s_lshl_b32 s14, s74, 14
    s_lshl_b32 s15, s77, 9
    s_add_u32 s14, s14, s15
    s_lshr_b32 s15, s75, 2
    s_lshl_b32 s15, s15, 8
    s_add_u32 s14, s14, s15
    s_add_u32 s14, s14, {QOFF}
    v_cmp_le_u32 vcc, 8, v47
    """)
    for half in range(2):
        for r in range(4): A(f"v_cndmask_b32 v{24+8*half+r}, v{24+8*half+r}, v{28+8*half+r}, vcc")
        vm.issue(f"qp{half}", f"buffer_store_dwordx4 v[{24+8*half}:{27+8*half}], v50, s[44:47], s14 offen offset:{128*half} {qpol}")
    stamp(2)
    cur[0] = DW
    while vm.has("qp1"): paced()
    A("s_add_u32 s14, s22, s75"); A("v_mov_b32 v50, 0"); A("v_mov_b32 v51, 1"); A("s_mov_b64 exec, 1")
    vm.issue("fl", f"buffer_store_byte v51, v50, s[68:71], s14 offen {fpol}")
    A("s_mov_b64 exec, -1")
    while kvn[0] < JC: paced()
    assert not vm.has("fl"), "flag store must retire before the join"
    A("s_branch L_join")
    n0 = ns[0]
    A("L_w123:")
    kvn[0] = 0; vm.q = []; cur[0] = D; gap[0] = 0
    for _ in range(D): kv_next()
    setup()
    while kvn[0] < JC:
        paced()
        if kvn[0] in (D + 1, 22, 38): tl({D + 1: 38, 22: 39, 38: 40}[kvn[0]])
    A("L_join:")
    ns[0] = n0
    stamp(2); tl(34)
    vm.q = [f"K{j}" for j in range(JC - max(D, DW), JC)]
    cur[0] = D
    A("v_mov_b32 v56, 0"); A("s_mov_b32 s15, 0x01010101")
    def flagchk():
        A("v_and_b32 v48, v48, v49"); A("v_and_b32 v48, s15, v48"); A("v_readfirstlane_b32 s14, v48"); A("s_cmp_eq_u32 s14, s15")
    vm.issue("cnt", f"buffer_load_dwordx2 v[48:49], v56, s[68:71], s22 offen sc1")
    for _ in range(D): paced()
    vm.wait("cnt")
    flagchk(); A("s_cbranch_scc1 L_cntok")
    A("s_mov_b32 s17, 0x8000")
    A("L_cntspin:")
    A("buffer_load_dwordx2 v[48:49], v56, s[68:71], s22 offen sc1"); A("s_waitcnt vmcnt(0)")
    flagchk(); A("s_cbranch_scc1 L_cntok")
    retry("s17", "L_cntspin", qsleep)
    A("L_cntok:")
    tl(35)
    vm.issue("q0", f"buffer_load_dwordx4 v[24:27], v63, s[44:47], s21 offen {qpol}")
    vm.issue("q1", f"buffer_load_dwordx4 v[28:31], v63, s[44:47], s21 offen offset:16 {qpol}")
    while kvn[0] < I0: paced()
    tl(36)
    vm.wait("q1")
    tl(37)
    def qred():
        red_sw("v_add_f32", [f"v{24+r}" for r in range(8)], [f"v{32+r}" for r in range(8)])
        for r in range(4): A(f"v_cvt_pk_bf16_f32 v{8+r}, v{24+2*r}, v{25+2*r}")
    interleave(capture(qred), [paced] * 2)
    stamp(3)
    def dots(i, sl):
        b = slot(sl)
        if sl >= 48:
            b = 48 + 4 * (i & 1)
            for r in range(4): A(f"v_accvgpr_read_b32 v{b+r}, a{4*(sl-48)+r}")
        A(f"v_dot2_f32_bf16 v{24+i}, v{b}, v8, 0")
        for r in range(1, 4): A(f"v_dot2_f32_bf16 v{24+i}, v{b+r}, v{8+r}, v{24+i}")
    def kreduce():
        for u in range(8): A(f"v_add_f32_dpp v{24+u}, v{24+u}, v{24+u} row_ror:8 row_mask:0xf bank_mask:0x3")
        for u in range(8): A(f"v_add_f32_dpp v{24+u}, v{32+u}, v{32+u} row_ror:8 row_mask:0xf bank_mask:0xc")
        for u in range(4): A(f"v_add_f32_dpp v{24+u}, v{24+u}, v{24+u} row_shl:4 row_mask:0xf bank_mask:0x5")
        for u in range(4): A(f"v_add_f32_dpp v{24+u}, v{28+u}, v{28+u} row_shr:4 row_mask:0xf bank_mask:0xa")
        A("""
        v_cndmask_b32 v28, v24, v26, s[10:11]
        v_cndmask_b32 v29, v26, v24, s[10:11]
        v_cndmask_b32 v30, v25, v27, s[10:11]
        v_cndmask_b32 v31, v27, v25, s[10:11]
        v_add_f32_dpp v28, v29, v28 quad_perm:[2,3,0,1] row_mask:0xf bank_mask:0xf
        v_add_f32_dpp v30, v31, v30 quad_perm:[2,3,0,1] row_mask:0xf bank_mask:0xf
        v_cndmask_b32 v24, v28, v30, s[12:13]
        v_cndmask_b32 v25, v30, v28, s[12:13]
        v_add_f32_dpp v24, v25, v24 quad_perm:[1,0,3,2] row_mask:0xf bank_mask:0xf
        """)
        rbf("v24", "v25"); A("v_mul_f32 v24, s16, v24"); rbf("v24", "v25")
        A("ds_write_b32 v44, v24"); A("v_add_u32 v44, 256, v44")
    def clears():
        A(f"""
        s_mul_i32 s14, s76, 2560
        s_mul_i32 s15, s3, 640
        s_add_u32 s14, s14, s15
        s_lshl_b32 s15, s18, 2
        s_add_u32 s15, s15, s3
        s_lshl_b32 s15, s15, 7
        s_add_u32 s15, s15, {ACT - 640}
        s_add_u32 s17, s20, {HOFF - 640}
        s_cmp_eq_u32 s19, 1
        s_cselect_b32 s15, s15, s17
        s_cselect_b32 s17, 48, 44
        v_lshlrev_b32 v56, 4, v1
        v_add_u32 v57, s14, v56
        v_add_u32 v58, s15, v56
        v_cmp_le_u32 vcc, 40, v1
        v_cndmask_b32 v57, v57, v58, vcc
        v_mov_b32 v58, {OOB}
        v_cmp_le_u32 vcc, s17, v1
        v_cndmask_b32 v57, v57, v58, vcc
        v_mov_b32 v40, -1
        v_mov_b32 v41, -1
        v_mov_b32 v42, -1
        v_mov_b32 v43, -1
        """)
        vm.issue("clr", f"buffer_store_dwordx4 v[40:43], v57, s[44:47], 0 offen {cpol}")
    C = 16 * NS
    nis = C + DH - kvn[0]; isd = 0
    for j in range(C):
        vm.wait(f"K{j}")
        if j & 15 == 0: tl(j >> 4)
        dots(j & 15, j)
        while isd < (j + 1) * nis // C:
            paced(); isd += 1
        if j & 15 == 15: kreduce()
        if j == CJ: clears()
    assert kvn[0] == C + DH
    assert not vm.has("clr")
    stamp(2)
    A(f"s_mov_b32 s77, {T0 + NS * RT}"); A("s_mov_b32 s4, 1"); A("s_mov_b64 vcc, 0")
    if BD or BF:
        A("s_cmp_eq_u32 s19, 3"); A(f"s_cselect_b32 s77, {T0 + NS * RT - BD}, s77")
        A("s_cmp_eq_u32 s19, 1"); A(f"s_cselect_b32 s77, {T0 + NS * RT - BF}, s77")
    if stamps & 4: A(f"s_mov_b32 s84, {NS}")
    rate = [RT]
    lab = [0]
    def strict(pref, j):
        if len(DS) == 1: return
        lab[0] += 1; L = f"L_sk{lab[0]}"
        A(f"s_cbranch_vccnz {L} ;opt")
        for lv in range(len(DS) - 2, -1, -1):
            n = vm.count(f"{pref}{j - DS[lv]}")
            if n is not None: A(f"s_waitcnt vmcnt({n}) ;opt")
            if lv: A(f"s_cmp_eq_u32 s4, {lv} ;opt"); A(f"s_cbranch_scc1 {L} ;opt")
        A(f"{L}:")
    def ctl_step(i):
        if not ctl: return
        if i == 0: A("s_memrealtime s[6:7]")
        if i == 1:
            A("s_waitcnt lgkmcnt(0)")
            if stamps & 4:
                A("s_mov_b32 m0, s84"); A("s_add_u32 s84, s84, 1"); A("v_writelane_b32 v61, s6, m0")
            A("s_sub_u32 s79, s6, s100"); A("s_sub_u32 s79, s79, s77"); A("s_mov_b32 s4, 0")
            for t in TS: A(f"s_cmp_gt_i32 s79, {t}"); A("s_addc_u32 s4, s4, 0")
            A(f"s_cmp_eq_u32 s4, {len(DS)-1}"); A("s_cselect_b64 vcc, -1, 0"); A(f"s_add_u32 s77, s77, {rate[0]}")
            if LK:
                A(f"s_min_i32 s79, s79, {LC}"); A(f"s_max_i32 s79, s79, {-LC}"); A(f"s_ashr_i32 s79, s79, {LK}"); A("s_add_u32 s77, s77, s79")
    assert len(TS) == len(DS) - 1
    nwo = -(-40 // (16 - NS))
    WOS = {3: (0, 3, 6), 4: (0, 2, 4, 6), 5: (0, 2, 4, 6, 7)}[nwo]
    assert max(WOS) + DH <= 15
    A(f"s_mov_b32 s81, {NS}"); A(f"s_mov_b32 s14, {OOB if nowo else 0}"); A("s_mov_b32 s15, 0"); A("s_mov_b32 s17, 0")
    WT = 128
    vm.q = [f"K{j}" for j in range(DH)]
    A("L_kloop:")
    for i in range(16):
        vm.wait(f"K{i}")
        dots(i, i)
        if i - DH in WOS:
            assert not vm.has(f"wo{i-DH}")
            t = WT + 4 * WOS.index(i - DH)
            A("s_set_gpr_idx_on s17, gpr_idx(DST)")
            for r in range(4): A(f"v_accvgpr_write_b32 a{r}, v{t+r}")
            A("s_set_gpr_idx_off"); A("s_add_u32 s17, s17, 4")
        ctl_step(i)
        if i in WOS:
            t = WT + 4 * WOS.index(i)
            vm.issue(f"wo{i}", f"buffer_load_dwordx4 v[{t}:{t+3}], v60, s[40:43], s14 offen {wpol}")
            A("s_add_u32 s14, s14, 256"); A("s_add_u32 s15, s15, 1"); A("s_cmp_eq_u32 s15, 5")
            A("s_cselect_b32 s23, 3840, 0"); A("s_cselect_b32 s15, 0, s15"); A("s_add_u32 s14, s14, s23")
            A("s_cmp_ge_u32 s14, 40960"); A(f"s_cselect_b32 s14, {OOB}, s14")
        if (i + DH) % 16 == 0:
            A("s_cmp_lg_u32 s81, 15"); A("s_cbranch_scc1 L_knosw")
            A("s_mov_b32 s28, s8"); A("s_mov_b32 s29, s9"); A("s_mov_b32 s80, 0")
            A("L_knosw:")
        j = i + DH
        strict("K", j)
        vm.issue(f"K{j}", kv_text(j % 16, j))
        if j & 3 == 3: A("s_add_u32 s80, s80, 16384")
    assert vm.q == [f"K{16+j}" for j in range(DH)], vm.q
    kreduce()
    A("s_add_u32 s81, s81, 1"); A("s_cmp_lt_u32 s81, 16"); A("s_cbranch_scc1 L_kloop")
    stamp()
    vm.q = [f"V{j}" for j in range(DH)]; kvn[0] = DH
    vnext = lambda: kv_next("V")
    rate[0] = RV or RT
    if TX: A(f"s_add_u32 s77, s77, {TX}")
    A("v_and_b32 v56, 7, v1"); A("v_lshlrev_b32 v56, 3, v56")
    vm.issue("xr", "buffer_load_dwordx2 v[62:63], v56, s[48:51], s20 offen")
    A("v_subrev_u32 v44, 4096, v44")
    A("s_waitcnt lgkmcnt(0)")
    for i in range(16): A(f"ds_read_b32 v{24+i}, v44 offset:{256*i}")
    A(f"s_mov_b32 s17, {f2u(1.4426950408889634)}")
    assert FI in (0, 4)
    A(f"""
    s_cmp_eq_u32 s19, 3
    s_cbranch_scc1 L_pdown
    v_lshrrev_b32 v56, 5, v1
    v_and_b32 v57, 3, v1
    v_xor_b32 v56, v56, v57
    v_lshrrev_b32 v57, 2, v1
    v_mul_u32_u24 v60, 3456, v57
    v_lshl_add_u32 v60, v56, 4, v60
    s_lshl_b32 s14, s18, 6
    v_add_u32 v60, s14, v60
    s_mul_i32 s60, s3, {64*3456}
    s_mov_b32 s62, {16*3456}
    s_lshl_b32 s63, s3, 12
    s_add_u32 s63, s63, {L_W}
    s_cmp_eq_u32 s19, 1
    s_cselect_b32 s78, {0 if noffn else FI}, 0
    s_mov_b32 s37, s78
    s_mov_b32 s61, 32
    s_branch L_pdone
    L_pdown:
    v_lshrrev_b32 v60, 1, v1
    v_mul_u32_u24 v60, 1280, v60
    v_and_b32 v56, 1, v1
    v_lshl_add_u32 v60, v56, 4, v60
    s_lshl_b32 s14, s18, 5
    v_add_u32 v60, s14, v60
    s_mul_i32 s60, s3, {32*1280}
    s_mov_b32 s62, {128*1280}
    s_mul_i32 s63, s3, 14336
    s_add_u32 s63, s63, {L_W}
    s_mov_b32 s78, {0 if noffn else DI}
    s_mov_b32 s37, 0
    s_mov_b32 s61, 0
    L_pdone:
    s_waitcnt lgkmcnt(0)
    """)
    def sm1():
        A("v_max3_f32 v40, v24, v25, v26")
        for i in range(3, 15, 2): A(f"v_max3_f32 v40, v40, v{24+i}, v{25+i}")
        A("v_max_f32 v40, v40, v39")
        red64("v_max_f32", "v40", "v41")
        for i in range(16):
            A(f"v_sub_f32 v{24+i}, v{24+i}, v40")
        for i in range(16): A(f"v_mul_f32 v{24+i}, s17, v{24+i}")
        for i in range(16): A(f"v_exp_f32 v{24+i}, v{24+i}")
        A("v_add_f32 v41, v24, v25"); A("v_add_f32 v42, v26, v27")
        for i in range(4, 16, 2): A(f"v_add_f32 v41, v41, v{24+i}"); A(f"v_add_f32 v42, v42, v{25+i}")
        A("v_add_f32 v41, v41, v42")
        red64("v_add_f32", "v41", "v42")
        A(f"s_lshl_b32 s14, s3, 3"); A("v_mov_b32 v56, s14"); A(f"ds_write_b64 v56, v[40:41] offset:{L_ST}")
    e1 = (E + 1) // 2
    interleave(capture(sm1), [vnext] * e1)
    A(f"""
    s_waitcnt lgkmcnt(0)
    s_barrier
    v_mov_b32 v56, 0
    ds_read_b128 v[48:51], v56 offset:{L_ST}
    ds_read_b128 v[52:55], v56 offset:{L_ST+16}
    """)
    A(f"""
    s_add_u32 s14, s22, s75
    s_cmp_eq_u32 s3, 0
    s_cselect_b32 s14, s14, {OOB}
    v_mov_b32 v57, 3
    s_mov_b64 exec, 1
    """)
    vm.issue("fl2", f"buffer_store_byte v57, v56, s[68:71], s14 offen {fpol}")
    A("s_mov_b64 exec, -1")
    if E > e1: vnext()
    A("s_waitcnt lgkmcnt(0)")
    def sm2():
        A("v_max3_f32 v42, v48, v50, v52"); A("v_max_f32 v42, v42, v54")
        for j in range(4): A(f"v_sub_f32 v{48+2*j}, v{48+2*j}, v42")
        A("v_sub_f32 v40, v40, v42")
        for j in range(4): A(f"v_mul_f32 v{48+2*j}, s17, v{48+2*j}")
        A("v_mul_f32 v40, s17, v40")
        for j in range(4): A(f"v_exp_f32 v{48+2*j}, v{48+2*j}")
        A("v_exp_f32 v40, v40")
        A("v_mul_f32 v43, v48, v49"); A("v_fmac_f32 v43, v50, v51"); A("v_fmac_f32 v43, v52, v53"); A("v_fmac_f32 v43, v54, v55")
        A("v_rcp_f32 v41, v43")
        A("v_fma_f32 v42, -v43, v41, 1.0"); A("v_fma_f32 v41, v42, v41, v41"); A("v_mul_f32 v40, v40, v41")
        for i in range(16): A(f"v_mul_f32 v{24+i}, v{24+i}, v40")
        for i in range(16): A(f"v_cvt_pk_bf16_f32 v{24+i}, v{24+i}, v{24+i}")
        for i in range(2, 16): A(f"ds_write_b32 v44, v{24+i} offset:{256*i}")
        A("v_add_u32 v44, 512, v44")
        A("v_mov_b32 v42, v25")
    interleave(capture(sm2), [vnext] * (E - e1 - 1 if E > e1 else 0))
    def stage(k):
        if k == 0:
            A(f"s_sub_u32 s5, s81, {FS}"); A("s_cmp_lt_u32 s5, s78")
            A(f"s_cselect_b32 m0, s63, {L_OP}"); A(f"s_cselect_b32 s23, s60, {OOB}")
            vm.issue("st0", f"buffer_load_dwordx4 v60, s[52:55], s23 offen {wpol} lds")
        else:
            A("s_add_u32 s23, s63, 40960")
            A("s_cmp_lt_u32 s5, s37")
            A(f"s_cselect_b32 m0, s23, {L_OP}"); A(f"s_cselect_b32 s23, s60, {OOB}")
            vm.issue("st1", f"buffer_load_dwordx4 v60, s[56:59], s23 offen {wpol} lds")
            A("s_cmp_lt_u32 s5, s78")
            A("s_cselect_b32 s23, s62, 0"); A("s_cselect_b32 s82, 1024, 0"); A("s_cselect_b32 s83, s61, 0")
            A("s_add_u32 s60, s60, s23"); A("s_add_u32 s63, s63, s82"); A("v_xor_b32 v60, s83, v60")
    assert max(GS) + DH <= 15
    buildA(0, "v24", 0)
    for i in range(16):
        ab = 16 + 4 * (i & 1)
        if vm.has(f"V{i}"): vm.wait(f"V{i}")
        A(f"v_mfma_f32_16x16x32_bf16 v[12:15], v[{ab}:{ab+3}], v[{slot(i)}:{slot(i)+3}], {'0' if i == 0 else 'v[12:15]'}")
        ctl_step(i)
        if kvn[0] == i + DH:
            strict("V", kvn[0]); vnext()
        if i < 15: buildA((i + 1) & 1, "v24", i + 1)
    assert kvn[0] == 16 + DH
    assert vm.q == [f"V{16+j}" for j in range(DH)], vm.q
    A("s_mov_b32 s81, 1")
    if warm: A(f"s_cmp_eq_u32 s3, {WW}"); A(f"s_cselect_b32 s36, {WI}, 99")
    vm.q = [f"V{j}" for j in range(DH)]
    A("L_vloop:")
    A("s_waitcnt lgkmcnt(0)")
    A("v_mov_b32 v40, v42")
    A("ds_read_b32 v42, v44"); A("v_add_u32 v44, 256, v44")
    buildA(0, "v40", 0)
    for i in range(16):
        ab = 16 + 4 * (i & 1)
        vm.wait(f"V{i}")
        A(f"v_mfma_f32_16x16x32_bf16 v[12:15], v[{ab}:{ab+3}], v[{slot(i)}:{slot(i)+3}], v[12:15]")
        ctl_step(i)
        if i in GS: stage(GS.index(i))
        if warm and i == 9:
            A("s_cmp_eq_u32 s81, s36"); A("s_cbranch_scc1 L_warm"); A("L_back:")
        j = i + DH
        strict("V", j)
        vm.issue(f"V{j}", kv_text(j % 16, j))
        if j & 3 == 3: A("s_add_u32 s80, s80, 16384")
        if i < 15: buildA((i + 1) & 1, "v40", i + 1)
    assert vm.q == [f"V{16+j}" for j in range(DH)], vm.q
    A("s_add_u32 s81, s81, 1"); A("s_cmp_lt_u32 s81, 16"); A("s_cbranch_scc1 L_vloop")
    stamp()
    if stamps & 4:
        A("s_memrealtime s[6:7]"); A("s_waitcnt lgkmcnt(0)"); A("v_writelane_b32 v61, s6, 32")
        A("s_lshl_b32 s14, s2, 10"); A("s_add_u32 s14, s14, 0x3000000"); A("v_lshlrev_b32 v145, 2, v0")
        A("buffer_store_dword v61, v145, s[44:47], s14 offen")
    A(";TAILBEGIN")
    A(f"""
    v_lshlrev_b32 v61, 2, v1
    buffer_load_dword v45, v61, s[68:71], 0 offen sc1
    v_lshlrev_b32 v58, 5, v47
    v_and_b32 v59, 1, v46
    v_lshlrev_b32 v59, 4, v59
    v_add_u32 v58, v58, v59
    v_mov_b32 v57, v58
    v_lshrrev_b32 v59, 1, v46
    v_lshlrev_b32 v59, 9, v59
    v_add_u32 v58, v58, v59
    s_lshl_b32 s14, s3, 10
    v_add_u32 v58, s14, v58
    ds_write_b128 v58, v[12:15] offset:{L_RED}
    v_and_b32 v59, 7, v47
    v_lshlrev_b32 v59, 2, v59
    v_add_u32 v59, v59, v46
    v_lshlrev_b32 v59, 2, v59
    s_lshl_b32 s14, s3, 7
    v_add_u32 v59, s14, v59
    s_mul_i32 s14, s3, 2560
    v_add_u32 v57, s14, v57
    s_waitcnt lgkmcnt(0)
    s_barrier
    """)
    for w in range(4): A(f"ds_read_b32 v{24+w}, v59 offset:{L_RED + 1024*w}")
    A("""
    s_waitcnt lgkmcnt(0)
    v_add_f32 v24, v24, v25
    v_add_f32 v26, v26, v27
    v_add_f32 v24, v24, v26
    v_cvt_pk_bf16_f32 v40, v24, v24
    """)
    if debug:
        A("s_lshl_b32 s14, s76, 9"); A("s_add_u32 s14, s14, 0x1100000")
        A("buffer_store_dword v24, v59, s[44:47], s14 offen")
    OP0 = 128
    for t in range(8):
        buildA(t & 1, "v40", t)
        ab = 16 + 4 * (t & 1)
        for s in range(5):
            u = 5 * t + s
            A(f"v_mfma_f32_16x16x32_bf16 v[{OP0+4*s}:{OP0+3+4*s}], v[{ab}:{ab+3}], a[{4*u}:{4*u+3}], {'0' if t == 0 else f'v[{OP0+4*s}:{OP0+3+4*s}]'}")
    A("s_mov_b32 exec_hi, 0")
    for s in range(5): A(f"ds_write_b128 v57, v[{OP0+4*s}:{OP0+3+4*s}] offset:{L_OP + 512*s}")
    A("s_mov_b64 exec, -1")
    A("v_lshlrev_b32 v56, 4, v0")
    A("s_waitcnt lgkmcnt(0)")
    A("s_barrier")
    A("s_cmp_eq_u32 s3, 3"); A("s_cbranch_scc1 L_w3")
    for w in range(4): A(f"ds_read_b128 v[{24+4*w}:{27+4*w}], v56 offset:{L_OP + 2560*w}")
    A("s_mul_i32 s14, s76, 2560"); A(f"v_mov_b32 v58, {OOB}"); A("v_cmp_gt_u32 vcc, 160, v0"); A("v_cndmask_b32 v56, v58, v56, vcc")
    A("s_waitcnt lgkmcnt(0)")
    for r in (0, 2):
        A(f"v_pk_add_f32 v[{24+r}:{25+r}], v[{24+r}:{25+r}], v[{28+r}:{29+r}]"); A(f"v_pk_add_f32 v[{32+r}:{33+r}], v[{32+r}:{33+r}], v[{36+r}:{37+r}]")
    for r in (0, 2): A(f"v_pk_add_f32 v[{24+r}:{25+r}], v[{24+r}:{25+r}], v[{32+r}:{33+r}]")
    for r in range(4): A(f"v_min_u32 v{24+r}, -2, v{24+r}")
    A(f"buffer_store_dwordx4 v[24:27], v56, s[44:47], s14 offen {ppol}")
    A("s_waitcnt vmcnt(1)"); A("s_branch L_nopub")
    A("L_w3:"); A("s_waitcnt vmcnt(0)")
    A("L_nopub:")
    stamp()
    A("s_cmp_eq_u32 s19, 0"); A("s_cbranch_scc1 L_fin")
    A("s_cmp_eq_u32 s19, 2"); A("s_cbranch_scc1 L_late_done")
    A("s_cmp_eq_u32 s19, 3"); A("s_cbranch_scc1 L_late_down")
    if noffn: A(f"s_mov_b32 s60, {OOB}")
    A("v_xor_b32 v59, 32, v60")
    for n in range(FI, 12):
        if n == 8: A("s_cmp_ge_u32 s3, 2"); A("s_cbranch_scc1 L_late_done")
        if n and n % 4 == 0: A(f"s_add_u32 s60, s60, {192*3456}"); A("s_add_u32 s63, s63, 12288")
        A("s_mov_b32 m0, s63"); A("s_add_u32 s23, s63, 40960")
        A(f"buffer_load_dwordx4 v{60 - (n & 1)}, s[52:55], s60 offen {wpol} lds")
        A("s_mov_b32 m0, s23"); A("s_add_u32 s63, s63, 1024")
        A(f"buffer_load_dwordx4 v{60 - (n & 1)}, s[56:59], s60 offen {wpol} lds")
        A("s_add_u32 s60, s60, s62")
    A("s_branch L_late_done")
    A("L_late_down:")
    if noffn: A(f"s_mov_b32 s60, {OOB}")
    for n in range(DI, 14):
        A("s_mov_b32 m0, s63"); A("s_add_u32 s63, s63, 1024")
        A(f"buffer_load_dwordx4 v60, s[52:55], s60 offen {wpol} lds")
        A("s_add_u32 s60, s60, s62")
    A("L_late_done:")
    A("s_mov_b32 s15, 0x8000"); A("s_mov_b32 s14, 0x03030303")
    A("v_cmp_ne_u32 vcc, s14, v45"); A("s_cbranch_vccz L_initok")
    A("L_initspin:")
    A("buffer_load_dword v45, v61, s[68:71], 0 offen sc1"); A("s_waitcnt vmcnt(0)")
    A("v_cmp_ne_u32 vcc, s14, v45"); A("s_cbranch_vccz L_initok")
    retry("s15", "L_initspin")
    A("L_initok:")
    A("s_cmp_eq_u32 s19, 2"); A("s_cbranch_scc1 L_reducer")
    A("s_cmp_eq_u32 s19, 3"); A("s_cbranch_scc1 L_down")
    A(f"""
    v_and_b32 v56, 7, v47
    v_mul_u32_u24 v57, 1280, v56
    v_lshrrev_b32 v58, 3, v47
    v_lshlrev_b32 v58, 6, v58
    v_lshlrev_b32 v59, 4, v46
    v_add3_u32 v57, v57, v58, v59
    s_lshl_b32 s14, s3, 7
    s_add_u32 s14, s14, {HOFF}
    s_add_u32 s15, s14, 1024
    s_cmp_lt_u32 s3, 2
    s_cselect_b32 s15, s15, {OOB}
    s_cselect_b32 s17, 1.0, 0
    s_mov_b32 s21, {f2u(-1/128)}
    s_cselect_b32 s21, {f2u(-1/192)}, s21
    s_mov_b32 s20, 0x8000
    v_and_b32 v40, 3, v47
    v_lshrrev_b32 v41, 2, v47
    v_lshrrev_b32 v42, 1, v40
    v_lshlrev_b32 v42, 5, v42
    v_lshlrev_b32 v43, 3, v46
    v_add3_u32 v41, v41, v42, v43
    v_lshlrev_b32 v41, 6, v41
    v_and_b32 v40, 1, v40
    v_lshl_add_u32 v41, v40, 3, v41
    v_lshl_add_u32 v41, v46, 4, v41
    s_lshl_b32 s22, s3, 12
    s_add_u32 s22, s22, {L_W}
    v_add_u32 v40, s22, v41
    v_xor_b32 v41, 16, v40
    v_xor_b32 v42, 32, v40
    v_xor_b32 v43, 48, v40
    """)
    WB, AC = 160, 128
    def wreg(i, m, s): return WB + 4 * (8 * i + 4 * m + s)
    def trblk(i):
        for m in range(2):
            for s in range(4):
                b = wreg(i, m, s); off = m * 40960 + i * 16384
                if off + 256 > 65535:
                    assert i == 2 and m == 1
                    A(f"ds_read_b64_tr_b16 v[{b}:{b+1}], v{48+s} offset:{i*16384}"); A(f"ds_read_b64_tr_b16 v[{b+2}:{b+3}], v{48+s} offset:{i*16384+256}")
                else:
                    A(f"ds_read_b64_tr_b16 v[{b}:{b+1}], v{40+s} offset:{off}"); A(f"ds_read_b64_tr_b16 v[{b+2}:{b+3}], v{40+s} offset:{off+256}")
    for t in range(4): A(f"v_add_u32 v{48+t}, 40960, v{40+t}")
    if FI: trblk(0)
    A(f"""
    v_lshlrev_b32 v56, 5, v56
    s_lshl_b32 s22, s3, 3
    v_add_u32 v58, s22, v56
    v_lshrrev_b32 v59, 1, v46
    v_lshlrev_b32 v59, 8, v59
    v_and_b32 v60, 1, v46
    v_lshlrev_b32 v60, 4, v60
    v_add3_u32 v59, v59, v56, v60
    s_lshl_b32 s22, s3, 9
    v_add_u32 v59, s22, v59
    v_and_b32 v60, 7, v1
    v_lshlrev_b32 v60, 5, v60
    v_lshrrev_b32 v61, 3, v1
    v_lshl_add_u32 v60, v61, 2, v60
    s_lshl_b32 s22, s3, 12
    v_add_u32 v60, s22, v60
    """)
    def hpoll():
        A(f"buffer_load_dwordx4 v[64:67], v57, s[44:47], s14 offen {lpol}")
        A(f"buffer_load_dwordx4 v[68:71], v57, s[44:47], s14 offen offset:512 {lpol}")
        A(f"buffer_load_dwordx4 v[72:75], v57, s[44:47], s15 offen {lpol}")
    hpoll()
    A("s_waitcnt vmcnt(3)")
    for i in range(1 if FI else 0, 3): trblk(i)
    A("s_branch L_hchk")
    A("L_hpoll:")
    hpoll()
    A("L_hchk:")
    A("s_waitcnt vmcnt(0)")
    sentinel(list(range(64, 76)), "v61")
    A("s_cbranch_vccz L_hok")
    retry("s20", "L_hpoll")
    A("L_hok:")
    stamp()
    H0 = 80
    unpack(H0, 64, 12)
    A(f"v_pk_add_f32 v[24:25], v[{H0}:{H0+1}], v[{H0+2}:{H0+3}]"); A(f"v_pk_add_f32 v[26:27], v[{H0+4}:{H0+5}], v[{H0+6}:{H0+7}]")
    for j in range(4, 12, 2):
        A(f"v_pk_add_f32 v[24:25], v[24:25], v[{H0+2*j}:{H0+2*j+1}]"); A(f"v_pk_add_f32 v[26:27], v[26:27], v[{H0+2*j+2}:{H0+2*j+3}]")
    A("v_pk_add_f32 v[24:25], v[24:25], v[26:27]"); A("v_add_f32 v24, v24, v25")
    red_hi("v_add_f32", ["v24"], ["v26"])
    A("v_mul_f32 v28, s21, v24"); A("v_mul_f32 v29, s21, v24")
    for r in range(30, 36): A(f"v_mov_b32 v{r}, 0")
    for j in range(12):
        t = 36 + 2 * (j & 1); a = (30 + 2 * (j & 1)) if j < 8 else 34
        A(f"v_pk_add_f32 v[{t}:{t+1}], v[{H0+2*j}:{H0+2*j+1}], v[28:29]")
        A(f"v_pk_fma_f32 v[{a}:{a+1}], v[{t}:{t+1}], v[{t}:{t+1}], v[{a}:{a+1}]")
    A("v_pk_add_f32 v[30:31], v[30:31], v[32:33]"); A("v_add_f32 v25, v30, v31"); A("v_add_f32 v34, v34, v35"); A("v_fmac_f32 v25, s17, v34")
    red_hi("v_add_f32", ["v25"], ["v26"])
    A(f"""
    s_mov_b64 exec, 0xff
    ds_write_b64 v58, v[24:25] offset:{L_ST + 64}
    s_mov_b64 exec, -1
    s_waitcnt lgkmcnt(0)
    s_barrier
    ds_read_b128 v[28:31], v56 offset:{L_ST + 64}
    ds_read_b128 v[32:35], v56 offset:{L_ST + 80}
    s_waitcnt lgkmcnt(0)
    """)
    def chan(ns_):
        A("v_add_f32 v24, v28, v30"); A("v_add_f32 v25, v32, v34"); A("v_add_f32 v24, v24, v25"); A(f"v_mul_f32 v24, {f2u(1/640)}, v24")
        A("v_add_f32 v25, v29, v31"); A("v_add_f32 v26, v33, v35"); A("v_add_f32 v25, v25, v26")
        for w in range(4): A(f"v_mul_f32 v{28+2*w}, {f2u(1/ns_[w])}, v{28+2*w}")
        for w in range(4): A(f"v_sub_f32 v{28+2*w}, v{28+2*w}, v24")
        A("v_mul_f32 v28, v28, v28"); A("v_fmac_f32 v28, v30, v30"); A("v_mul_f32 v32, v32, v32"); A("v_fmac_f32 v32, v34, v34")
        A(f"v_fmac_f32 v25, {f2u(ns_[0])}, v28"); A(f"v_fmac_f32 v25, {f2u(ns_[2])}, v32")
        A(f"v_mul_f32 v25, {f2u(1/640)}, v25")
        ln_consts("v24", "v25", "v26", "v27")
        A("v_sub_f32 v28, 0, v24"); A("v_sub_f32 v29, 0, v24"); A("v_mov_b32 v27, v26")
    chan([192.0, 192.0, 128.0, 128.0])
    norm(H0, 64, 12)
    for i in range(3):
        if i == 2: A("s_cmp_ge_u32 s3, 2"); A("s_cbranch_scc1 L_no3")
        for m in range(2):
            for s in range(4):
                d = AC + 4 * (4 * m + s); bb = wreg(i, m, s)
                A(f"v_mfma_f32_16x16x32_bf16 v[{d}:{d+3}], v[{64+4*i}:{67+4*i}], v[{bb}:{bb+3}], {'0' if i == 0 else f'v[{d}:{d+3}]'}")
    A("L_no3:")
    A("s_mov_b32 exec_lo, 0x00ff00ff"); A("s_mov_b32 exec_hi, 0xff00ff00")
    for m in range(2):
        for s in range(4):
            d = AC + 4 * (4 * m + s)
            A(f"ds_write_b128 v59, v[{d}:{d+3}] offset:{L_GR + 4096*s + 2048*m}")
    A("s_mov_b64 exec, -1"); A("s_waitcnt lgkmcnt(0)"); A("s_barrier")
    for p in range(16): A(f"ds_read_b32 v{64+p}, v60 offset:{L_GR + 256*p}")
    A("s_waitcnt lgkmcnt(0)")
    for base in (64, 72):
        A(f"v_pk_add_f32 v[{base}:{base+1}], v[{base}:{base+1}], v[{base+4}:{base+5}]"); A(f"v_pk_add_f32 v[{base+2}:{base+3}], v[{base+2}:{base+3}], v[{base+6}:{base+7}]")
    for base in (64, 72): A(f"v_pk_add_f32 v[{base}:{base+1}], v[{base}:{base+1}], v[{base+2}:{base+3}]")
    for base in (64, 72): A(f"v_add_f32 v{base}, v{base}, v{base+1}")
    rbf("v64", "v65"); rbf("v72", "v73")
    c0 = -2.0 * 0.7978845608028654 * 1.4426950408889634
    A(f"""
    v_mul_f32 v65, v64, v64
    v_mul_f32 v65, {f2u(0.044715)}, v65
    v_fma_f32 v65, v65, v64, v64
    v_mul_f32 v65, {f2u(c0)}, v65
    v_exp_f32 v65, v65
    v_add_f32 v65, 1.0, v65
    v_rcp_f32 v65, v65
    v_mul_f32 v64, v64, v65
    """)
    rbf("v64", "v66")
    A(f"""
    v_mul_f32 v64, v64, v72
    v_mov_b32_dpp v65, v64 quad_perm:[1,0,3,2] row_mask:0xf bank_mask:0xf
    v_cvt_pk_bf16_f32 v66, v64, v65
    v_min_u32 v66, -2, v66
    v_lshlrev_b32 v57, 1, v1
    s_lshl_b32 s14, s18, 2
    s_add_u32 s14, s14, s3
    s_lshl_b32 s14, s14, 7
    s_mov_b32 exec_lo, 0x55555555
    s_mov_b32 exec_hi, 0x55555555
    buffer_store_dword v66, v57, s[32:35], s14 offen {ppol}
    s_mov_b64 exec, -1
    """)
    stamp()
    A("s_branch L_fin")
    A("L_reducer:")
    n_keep = ns[0]
    ns[0] -= 2 if stamps & 1 else 0
    A(f"""
    v_lshrrev_b32 v56, 3, v1
    v_mul_u32_u24 v56, 2560, v56
    v_and_b32 v57, 7, v1
    v_lshlrev_b32 v58, 4, v57
    v_add_u32 v56, v56, v58
    s_mul_i32 s14, s72, {32*2560 - 2560}
    s_lshl_b32 s15, s20, 1
    s_add_u32 s14, s14, s15
    s_add_u32 s15, s14, {8*2560}
    s_add_u32 s17, s14, {16*2560}
    s_add_u32 s19, s14, {24*2560}
    s_mov_b32 s21, 0x8000
    L_rpoll:
    buffer_load_dwordx4 v[64:67], v56, s[44:47], s14 offen {lpol}
    buffer_load_dwordx4 v[68:71], v56, s[44:47], s15 offen {lpol}
    buffer_load_dwordx4 v[72:75], v56, s[44:47], s17 offen {lpol}
    buffer_load_dwordx4 v[76:79], v56, s[44:47], s19 offen {lpol}
    s_waitcnt vmcnt(0)
    """)
    sentinel(list(range(64, 80)), "v58")
    A("s_cbranch_vccz L_rok")
    retry("s21", "L_rpoll")
    A("L_rok:")
    for r in (0, 2):
        A(f"v_pk_add_f32 v[{64+r}:{65+r}], v[{64+r}:{65+r}], v[{68+r}:{69+r}]"); A(f"v_pk_add_f32 v[{72+r}:{73+r}], v[{72+r}:{73+r}], v[{76+r}:{77+r}]")
    for r in (0, 2): A(f"v_pk_add_f32 v[{64+r}:{65+r}], v[{64+r}:{65+r}], v[{72+r}:{73+r}]")
    red_hi("v_add_f32", [f"v{64+r}" for r in range(4)], [f"v{68+r}" for r in range(4)])
    A("""
    v_cvt_pk_bf16_f32 v68, v64, v65
    v_cvt_pk_bf16_f32 v69, v66, v67
    v_lshlrev_b32 v70, 16, v62
    v_and_b32 v71, 0xffff0000, v62
    v_lshlrev_b32 v72, 16, v63
    v_and_b32 v73, 0xffff0000, v63
    v_lshlrev_b32 v64, 16, v68
    v_and_b32 v65, 0xffff0000, v68
    v_lshlrev_b32 v66, 16, v69
    v_and_b32 v67, 0xffff0000, v69
    v_pk_add_f32 v[64:65], v[64:65], v[70:71]
    v_pk_add_f32 v[66:67], v[66:67], v[72:73]
    v_cvt_pk_bf16_f32 v68, v64, v65
    v_cvt_pk_bf16_f32 v69, v66, v67
    v_min_u32 v68, -2, v68
    v_min_u32 v69, -2, v69
    v_lshlrev_b32 v57, 3, v57
    """)
    A(f"s_add_u32 s14, s20, {HOFF}")
    A("s_mov_b64 exec, 0xff")
    A(f"buffer_store_dwordx2 v[68:69], v57, s[44:47], s14 offen {ppol}")
    A("s_mov_b64 exec, -1")
    stamp()
    A("s_branch L_fin")
    A("L_down:")
    A(f"""
    v_lshlrev_b32 v57, 7, v46
    v_lshl_add_u32 v57, v47, 4, v57
    s_lshl_b32 s14, s3, 9
    v_add_u32 v57, s14, v57
    v_mov_b32 v58, {OOB}
    v_cmp_gt_u32 vcc, 8, v47
    v_cndmask_b32 v57, v58, v57, vcc
    v_lshrrev_b32 v56, 3, v1
    v_mul_u32_u24 v60, 1280, v56
    v_and_b32 v59, 7, v1
    v_lshl_add_u32 v60, v59, 2, v60
    s_lshl_b32 s21, s18, 5
    s_add_u32 s22, s21, {HOFF}
    v_lshrrev_b32 v41, 2, v47
    v_lshl_add_u32 v41, v46, 3, v41
    v_lshlrev_b32 v41, 5, v41
    v_and_b32 v42, 3, v47
    v_lshl_add_u32 v41, v42, 3, v41
    s_mul_i32 s14, s3, 14336
    s_add_u32 s14, s14, {L_W}
    v_add_u32 v41, s14, v41
    v_lshlrev_b32 v58, 5, v47
    v_lshl_add_u32 v58, v46, 4, v58
    s_lshl_b32 s14, s3, 9
    v_add_u32 v58, s14, v58
    v_lshlrev_b32 v59, 6, v59
    v_lshl_add_u32 v59, v56, 2, v59
    s_waitcnt vmcnt(0)
    """)
    for j in range(14):
        A(f"ds_read_b64_tr_b16 v[{192+4*j}:{193+4*j}], v41 offset:{1024*j}")
        A(f"ds_read_b64_tr_b16 v[{194+4*j}:{195+4*j}], v41 offset:{1024*j + 128}")
    A("s_mov_b32 s20, 0x8000"); A("s_mov_b32 s15, 4096"); A("s_mov_b32 s17, 8192"); A("s_mov_b32 s19, 12288")
    A("s_mov_b32 s23, 16384"); A("s_mov_b32 s24, 20480"); A("s_mov_b32 s25, 24576")
    A("L_apoll:")
    so = ["0", "s15", "s17", "s19", "s23", "s24", "s25"]
    for i in range(14):
        A(f"buffer_load_dwordx4 v[{64+4*i}:{67+4*i}], v57, s[32:35], {so[i>>1]} offen offset:{2048*(i&1)} {lpol}")
    A(f"buffer_load_dword v120, v60, s[44:47], s22 offen {lpol}")
    A("s_waitcnt vmcnt(0)")
    sentinel(list(range(64, 121)), "v56")
    A("s_cbranch_vccz L_aok")
    retry("s20", "L_apoll")
    A("L_aok:")
    stamp()
    A("s_waitcnt lgkmcnt(0)")
    for i in range(14):
        d = 32 + 4 * (i & 1)
        A(f"v_mfma_f32_16x16x32_bf16 v[{d}:{d+3}], v[{64+4*i}:{67+4*i}], v[{192+4*i}:{195+4*i}], {'0' if i < 2 else f'v[{d}:{d+3}]'}")
    A("v_pk_add_f32 v[32:33], v[32:33], v[36:37]"); A("v_pk_add_f32 v[34:35], v[34:35], v[38:39]")
    A("s_mov_b32 exec_hi, 0"); A(f"ds_write_b128 v58, v[32:35] offset:{L_RED}"); A("s_mov_b64 exec, -1")
    A("s_waitcnt lgkmcnt(0)"); A("s_barrier")
    A("s_cmp_lg_u32 s3, 0"); A("s_cbranch_scc1 L_fin")
    for w in range(4):
        A(f"ds_read_b32 v{24+2*w}, v59 offset:{L_RED + 512*w}"); A(f"ds_read_b32 v{25+2*w}, v59 offset:{L_RED + 512*w + 32}")
    A("s_waitcnt lgkmcnt(0)")
    A("v_pk_add_f32 v[24:25], v[24:25], v[26:27]"); A("v_pk_add_f32 v[28:29], v[28:29], v[30:31]"); A("v_pk_add_f32 v[24:25], v[24:25], v[28:29]")
    A("""
    v_cvt_pk_bf16_f32 v26, v24, v25
    v_lshlrev_b32 v28, 16, v120
    v_and_b32 v29, 0xffff0000, v120
    v_lshlrev_b32 v24, 16, v26
    v_and_b32 v25, 0xffff0000, v26
    v_pk_add_f32 v[24:25], v[24:25], v[28:29]
    v_cvt_pk_bf16_f32 v26, v24, v25
    buffer_store_dword v26, v60, s[64:67], s21 offen
    """)
    A(";TAILEND")
    A("L_fin:")
    if stamps & 3:
        ns[0] = n_keep
        stamp(1)
        A("s_waitcnt lgkmcnt(0)")
        A("s_lshl_b32 s14, s2, 2"); A("s_add_u32 s14, s14, s3"); A("s_lshl_b32 s14, s14, 7"); A("s_add_u32 s14, s14, 0x3000000")
        A("v_mov_b32 v3, 0"); A("s_mov_b64 exec, 1")
        for i in range(ns[0]):
            A(f"v_mov_b32 v8, s{84+2*i}"); A(f"v_mov_b32 v9, s{85+2*i}")
            A(f"buffer_store_dwordx2 v[8:9], v3, s[44:47], s14 offen offset:{8*i}")
    A("L_end:"); A("s_endpgm")
    if warm:
        A("L_warm:"); A("s_mov_b64 exec, 0"); A("s_branch L_pad0")
        A("L_padend:"); A("s_mov_b64 exec, -1"); A("s_branch L_back")
    A('.section .rodata,"a"'); A(".p2align 6"); A(f".amdhsa_kernel {KN}")
    for l in ("next_free_vgpr 512", "next_free_sgpr 102", "accum_offset 256", "group_segment_fixed_size 0", "kernarg_size 96",
              "user_sgpr_count 2", "user_sgpr_kernarg_segment_ptr 1", "system_sgpr_workgroup_id_x 1", "float_denorm_mode_32 3"):
        A(f".amdhsa_{l}")
    A(".end_amdhsa_kernel")
    txt = A.render()
    if warm: txt = add_pads(txt, warm)
    return txt

if __name__ == "__main__":
    out = sys.argv[1]
    kw = {}
    for kv in sys.argv[2:]:
        k, v = kv.split("=")
        if k.endswith("pol"): kw[k] = v.replace("+", " ")
        elif k in ("DS", "TS", "GS"): kw[k] = tuple(int(t) for t in v.split(",") if t)
        else: kw[k] = int(v)
    open(out, "w").write(gen(**kw))
```

```python
import sys, struct
from asmlib import Asm
KN = "sequential_preLN__mha_block_cached__geglu_ffn__decode_kernel"

SLAB = 0x000000
HOFF = 0x0A0000
ACT  = 0x0A4000
LOC  = 0x0AB000
GLB  = 0x0B0000
QOFF = 0x0C0000
FLG  = 0x140000
FST  = 4224
WSN  = 0x168000
OOB  = 0x7F000000
L_RED = 0x0000
L_SC  = 0x1000
L_ST  = 0x5000
L_CT  = 0x5300
L_OP  = 0x5400
L_W   = 0x8000
L_GR  = 0x1000
LDS_SIZE = 0x8000 + 81920
TH = [0, 8, 4, 12, 2, 10, 6, 14, 1, 9, 5, 13, 3, 11, 7, 15]

def f2u(x): return "0x%08x" % struct.unpack("<I", struct.pack("<f", x))[0]

class VM:
    def __init__(s, A): s.A = A; s.q = []
    def issue(s, tag, text): s.A(text); s.q.append(tag)
    def wait(s, tag):
        if tag not in s.q: return
        i = len(s.q) - 1 - s.q[::-1].index(tag)
        n = len(s.q) - 1 - i
        assert n <= 63
        s.A(f"s_waitcnt vmcnt({n})"); s.q = s.q[i + 1:]
    def has(s, tag): return tag in s.q
    def count(s, tag):
        if tag not in s.q: return None
        i = len(s.q) - 1 - s.q[::-1].index(tag)
        return len(s.q) - 1 - i

def add_pads(txt, spacing):
    import subprocess, re
    lines = txt.split("\n")
    b = lines.index(";TAILBEGIN"); e = lines.index(";TAILEND")
    body = lines[b + 1:e]
    ins = [l for l in body if l.startswith("    ")]
    src = "\n".join(lines)
    open("pad.s", "w").write(src.replace("s_branch L_pad0", "s_branch L_padend"))
    r = subprocess.run(["llvm-mc", "-triple=amdgcn-amd-amdhsa", "-mcpu=gfx950", "-show-encoding", "pad.s"], capture_output=True, text=True)
    assert r.returncode == 0, r.stderr
    enc = [m.group(1).count(",") + 1 for m in re.finditer(r"; encoding: \[(.*?)\]", r.stdout)]
    allins = [i for i, l in enumerate(lines) if l.startswith("    ") and not l.strip().startswith(".")]
    assert len(enc) == len(allins), (len(enc), len(allins))
    size = dict(zip(allins, enc))
    out = lines[:b + 1]; acc = spacing; n = 0
    for i in range(b + 1, e):
        if i in size:
            if acc + size[i] > spacing:
                out.append(f"L_pad{n}:"); out.append(f"    s_cbranch_execz L_pad{n+1}"); n += 1; acc = 4
            acc += size[i]
        out.append(lines[i])
    out.append(f"L_pad{n}:"); out.append("    s_cbranch_execz L_padend")
    out += lines[e:]
    return "\n".join(out)

def gen(debug=0, stamps=0, wpol="nt", kvpol="nt", cpol="sc1", ppol="sc1", lpol="sc1", qpol="sc1", fpol="sc1", sleep=1,
        D=5, D0=5, DW=8, I0=62, JC=50, E=5, nowo=0, noffn=0, qsleep=8, NS=5, G=45, ctl=1, XK=2, GS=(3, 6), FI=4, DI=2, FS=8,
        L0=34, LO=8, HI=56, C0=0, GSH=1, CG=-5, GGS=1, GLO=-16, GHI=8, G2=2, C2=0, CP=(0, 8), PP=(0, 8), RI=4, RP=(1, 9), PL=1,
        LR=14, glob=1, warm=0, WI=10, WW=3, noclr=0, DQ0=4, CW=0):
    A = Asm(); vm = VM(A)
    DB = 4; DH = DB + 2
    ns = [0]
    def stamp(level=1):
        if stamps & level:
            i = ns[0]; ns[0] += 1
            A(f"s_memrealtime s[{84+2*i}:{85+2*i}]")
    def tl(idx):
        if stamps & 4:
            A("s_memrealtime s[86:87]"); A("s_waitcnt lgkmcnt(0)"); A(f"v_writelane_b32 v61, s86, {idx}")
    def rbf(v, t):
        A(f"v_cvt_pk_bf16_f32 {t}, {v}, {v}"); A(f"v_lshlrev_b32 {v}, 16, {t}")
    def red_sw(op, regs, tmps):
        for sw in ("v_permlane16_swap_b32", "v_permlane32_swap_b32"):
            for v, t in zip(regs, tmps): A(f"v_mov_b32 {t}, {v}")
            for v, t in zip(regs, tmps): A(f"{sw} {v}, {t}")
            for v, t in zip(regs, tmps): A(f"{op} {v}, {v}, {t}")
    def red_hi(op, regs, tmps):
        for v in regs: A(f"{op}_dpp {v}, {v}, {v} row_ror:8 row_mask:0xf bank_mask:0xf")
        red_sw(op, regs, tmps)
    def red64(op, v, t):
        A(f"{op}_dpp {v}, {v}, {v} quad_perm:[1,0,3,2] row_mask:0xf bank_mask:0xf")
        A(f"{op}_dpp {v}, {v}, {v} quad_perm:[2,3,0,1] row_mask:0xf bank_mask:0xf")
        A(f"{op}_dpp {v}, {v}, {v} row_half_mirror row_mask:0xf bank_mask:0xf")
        red_hi(op, [v], [t])
    def srd(d, lo, hi, n):
        A(f"s_mov_b32 s{d}, {lo}"); A(f"s_mov_b32 s{d+1}, {hi}"); A(f"s_mov_b32 s{d+2}, {n}"); A(f"s_mov_b32 s{d+3}, 0x20000")
    def buildA(aset, src, u):
        b = 16 + 4 * aset
        for r in range(4): A(f"v_and_b32_dpp v{b+r}, {src}, v{4+r} row_newbcast:{u} row_mask:0xf bank_mask:0xf")
    def slot(j): return 64 + 4 * j
    def sreg(sl): return f"v[{slot(sl)}:{slot(sl)+3}]" if sl < 48 else f"a[{4*(sl-48)}:{4*(sl-48)+3}]"
    def kv_text(sl, j): return f"buffer_load_dwordx4 {sreg(sl)}, v2, s[28:31], s80 offen offset:{(j&3)*1024} {kvpol}"
    kvn = [0]
    def kv_next(pref="K"):
        j = kvn[0]; kvn[0] += 1
        sl = j if (pref == "K" and j < 16 * NS) else j % 16
        vm.issue(f"{pref}{j}", kv_text(sl, j))
        if j & 3 == 3: A("s_add_u32 s80, s80, 16384")
        if pref == "K" and j in hooks: hooks[j]()
    hooks = {}
    cur = [D]
    def paced():
        j = kvn[0]
        vm.wait(f"K{j-cur[0]}")
        kv_next()
    gap = [0]
    def pace(lines, lim=999):
        for l in lines:
            A(l); gap[0] += 1
            if gap[0] >= G and kvn[0] < lim: paced(); gap[0] = 0
    def ln_consts(m, v, rc, t):
        rbf(m, t); rbf(v, t)
        A(f"v_add_f32 {v}, {f2u(1e-5)}, {v}"); rbf(v, t)
        A(f"v_sqrt_f32 {v}, {v}"); rbf(v, t)
        A(f"v_rcp_f32 {rc}, {v}")
    def interleave(lines, extras):
        n = len(lines); k = len(extras); done = 0
        for i, l in enumerate(lines):
            A(l)
            while done < k and (i + 1) * (k + 1) >= (done + 1) * n:
                extras[done](); done += 1
        while done < k: extras[done](); done += 1
    def capture(fn):
        save = A.lines; A.lines = []; fn(); out = A.lines; A.lines = save; return out
    def sentinel(regs, m):
        A(f"v_max3_u32 {m}, v{regs[0]}, v{regs[1]}, v{regs[2]}")
        rest = regs[3:]
        while len(rest) >= 2:
            A(f"v_max3_u32 {m}, {m}, v{rest[0]}, v{rest[1]}"); rest = rest[2:]
        if rest: A(f"v_max_u32 {m}, {m}, v{rest[0]}")
        A(f"v_cmp_eq_u32 vcc, -1, {m}")
    def retry(cnt, lab, sl=None):
        sl = sleep if sl is None else sl
        if sl: A(f"s_sleep {sl}")
        A(f"s_sub_u32 {cnt}, {cnt}, 1"); A(f"s_cmp_lg_u32 {cnt}, 0"); A(f"s_cbranch_scc1 {lab}")
    def unpack(U, P, n):
        for j in range(n):
            A(f"v_lshlrev_b32 v{U+2*j}, 16, v{P+j}"); A(f"v_and_b32 v{U+2*j+1}, 0xffff0000, v{P+j}")
    def norm(U, O, n):
        for j in range(n):
            u = U + 2 * j
            A(f"v_pk_add_f32 v[{u}:{u+1}], v[{u}:{u+1}], v[28:29]")
        for j in range(n):
            u = U + 2 * j
            A(f"v_cvt_pk_bf16_f32 v{O+j}, v{u}, v{u+1}")
        unpack(U, O, n)
        for j in range(n):
            u = U + 2 * j
            A(f"v_pk_mul_f32 v[{u}:{u+1}], v[{u}:{u+1}], v[26:27]")
        for j in range(n):
            u = U + 2 * j
            A(f"v_cvt_pk_bf16_f32 v{O+j}, v{u}, v{u+1}")

    def chan(ns_):
        A("v_add_f32 v24, v28, v30"); A("v_add_f32 v25, v32, v34"); A("v_add_f32 v24, v24, v25"); A(f"v_mul_f32 v24, {f2u(1/640)}, v24")
        A("v_add_f32 v25, v29, v31"); A("v_add_f32 v26, v33, v35"); A("v_add_f32 v25, v25, v26")
        for w in range(4): A(f"v_mul_f32 v{28+2*w}, {f2u(1/ns_[w])}, v{28+2*w}")
        for w in range(4): A(f"v_sub_f32 v{28+2*w}, v{28+2*w}, v24")
        A("v_mul_f32 v28, v28, v28"); A("v_fmac_f32 v28, v30, v30"); A("v_mul_f32 v32, v32, v32"); A("v_fmac_f32 v32, v34, v34")
        A(f"v_fmac_f32 v25, {f2u(ns_[0])}, v28"); A(f"v_fmac_f32 v25, {f2u(ns_[2])}, v32")
        A(f"v_mul_f32 v25, {f2u(1/640)}, v25")
        ln_consts("v24", "v25", "v26", "v27")
        A("v_sub_f32 v28, 0, v24"); A("v_sub_f32 v29, 0, v24"); A("v_mov_b32 v27, v26")

    A(f"; @launch grid=(256,1,1) block=(256,1,1) lds={LDS_SIZE}")
    A('.amdgcn_target "amdgcn-amd-amdhsa--gfx950"')
    A(".text"); A(f".globl {KN}"); A(".p2align 8"); A(f".type {KN},@function"); A(f"{KN}:")
    A("s_cmp_ge_u32 s2, 256"); A("s_cbranch_scc1 L_end")
    A("s_load_dwordx16 s[4:19], s[0:1], 0")
    A("s_load_dwordx8 s[20:27], s[0:1], 64")
    stamp(3 | 8 | 16)
    if stamps & 4: A("s_memrealtime s[100:101]")
    A(f"""
    v_and_b32 v1, 63, v0
    v_lshrrev_b32 v45, 6, v0
    v_lshrrev_b32 v46, 4, v1
    v_and_b32 v47, 15, v1
    v_readfirstlane_b32 s3, v45
    s_and_b32 s72, s2, 7
    s_lshr_b32 s73, s2, 3
    s_and_b32 s74, s73, 3
    s_lshl_b32 s75, s72, 2
    s_add_u32 s74, s74, s75
    s_lshr_b32 s75, s73, 2
    s_lshl_b32 s76, s75, 5
    s_add_u32 s76, s76, s74
    s_lshl_b32 s78, s3, 12
    v_lshlrev_b32 v2, 4, v1
    v_add_u32 v2, s78, v2
    s_lshl_b32 s78, s76, 20
    s_lshr_b32 s79, s76, 12
    s_mov_b32 s80, 0
    s_mov_b32 s30, 0x100000
    s_mov_b32 s31, 0x20000
    v_and_b32 v62, 7, v47
    v_mul_u32_u24 v3, 1280, v62
    v_lshrrev_b32 v56, 3, v1
    v_lshl_add_u32 v57, v56, 4, v3
    v_lshl_add_u32 v3, v46, 4, v3
    s_and_b32 s77, s75, 3
    s_waitcnt lgkmcnt(0)
    s_add_u32 s28, s6, s78
    s_addc_u32 s29, s7, s79
    """)
    srd(48, "s4", "s5", 10240)
    if stamps & 4: A("v_mov_b32 v61, 0"); A("v_writelane_b32 v61, s100, 63")
    A(f"v_mov_b32 v58, {L0}"); A(f"v_mov_b32 v59, {16 * NS}"); A("v_mov_b32 v50, 0"); A(f"ds_write_b64 v50, v[58:59] offset:{L_CT}")
    A("s_cmp_lg_u32 s3, 0"); A("s_cbranch_scc1 L_plain")

    def setup():
        srd(44, "s26", "s27", "0x40000000" if (debug or stamps) else WSN)
        A("s_add_u32 s8, s8, s78"); A("s_addc_u32 s9, s9, s79")
        srd(40, "s12", "s13", 4096 * 1280)
        srd(64, "s22", "s23", 10240)
        srd(68, "s24", "s25", 256)
        A(f"""
        s_lshr_b32 s14, s73, 1
        s_lshl_b32 s14, s14, 3
        s_add_u32 s14, s14, s72
        s_cmp_lt_u32 s14, 27
        s_cselect_b32 s15, 1, 0
        s_cselect_b32 s52, s16, s20
        s_cselect_b32 s53, s17, s21
        s_mov_b32 s56, s18
        s_mov_b32 s57, s19
        s_mov_b32 s54, {640 * 3456}
        s_mov_b32 s55, 0x20000
        s_mov_b32 s58, {640 * 3456}
        s_mov_b32 s59, 0x20000
        s_lshl_b32 s14, s14, 1
        s_and_b32 s81, s73, 1
        s_add_u32 s18, s14, s81
        s_sub_u32 s81, s73, 8
        s_cmp_lt_u32 s81, 5
        s_cselect_b32 s15, 2, s15
        s_lshl_b32 s81, s81, 2
        s_add_u32 s81, s81, s3
        s_lshl_b32 s81, s81, 6
        s_mul_i32 s20, s72, 1280
        s_add_u32 s20, s20, s81
        s_cmp_eq_u32 s15, 2
        s_cselect_b32 s20, s20, {OOB}
        s_lshl_b32 s14, s72, 2
        s_and_b32 s81, s73, 3
        s_add_u32 s14, s14, s81
        s_add_u32 s81, s14, 32
        s_cmp_ge_u32 s73, 28
        s_cselect_b32 s14, s14, s81
        s_cmp_ge_u32 s73, 24
        s_cselect_b32 s14, s14, 64
        s_cmp_lt_u32 s14, 40
        s_cselect_b32 s15, 3, s15
        s_cselect_b32 s18, s14, s18
        s_mov_b32 s19, s15
        s_add_u32 s32, s26, {ACT}
        s_addc_u32 s33, s27, 0
        s_mov_b32 s34, {216*128}
        s_mov_b32 s35, 0x20000
        s_mov_b32 s10, 0xcccccccc
        s_mov_b32 s11, 0xcccccccc
        s_mov_b32 s12, 0xaaaaaaaa
        s_mov_b32 s13, 0xaaaaaaaa
        v_and_b32 v58, 1, v47
        v_lshlrev_b32 v58, 4, v58
        v_mov_b32 v59, 0xffff
        v_lshlrev_b32 v58, v58, v59
        v_lshrrev_b32 v59, 1, v47
        """)
        assert 640 * 3456 == 1728 * 1280
        for r in range(4):
            A(f"v_cmp_eq_u32 vcc, {r}, v59"); A(f"v_cndmask_b32 v{4+r}, 0, v58, vcc")
        A(f"""
        s_lshl_b32 s14, s74, 7
        s_lshl_b32 s15, s3, 5
        s_add_u32 s14, s14, s15
        v_add_u32 v60, s14, v46
        v_mul_u32_u24 v60, 1280, v60
        v_lshl_add_u32 v60, v47, 4, v60
        v_lshlrev_b32 v63, 9, v46
        v_lshl_add_u32 v63, v47, 5, v63
        s_lshl_b32 s22, s74, 3
        s_add_u32 s21, s22, s75
        s_lshl_b32 s21, s21, 11
        s_add_u32 s21, s21, {QOFF}
        s_mul_i32 s22, s74, {FST}
        s_lshl_b32 s14, s75, 2
        s_add_u32 s22, s22, s14
        s_add_u32 s22, s22, {FLG}
        s_lshl_b32 s24, s72, 8
        s_add_u32 s24, s24, {LOC}
        s_lshl_b32 s25, s73, 2
        s_add_u32 s25, s25, s24
        s_add_u32 s6, s24, 128
        s_lshl_b32 s27, s72, 12
        s_add_u32 s27, s27, {GLB}
        s_lshl_b32 s14, s3, 12
        s_add_u32 s14, s14, {L_SC}
        v_lshlrev_b32 v44, 2, v1
        v_add_u32 v44, s14, v44
        s_mov_b32 s16, {f2u(128 ** -0.5)}
        """)

    XS, XA, W0, U0 = 216, 196, 216, 216
    def clears():
        A(f"""
        s_mul_i32 s14, s2, 3072
        v_lshlrev_b32 v58, 4, v1
        v_mov_b32 v52, -1
        v_mov_b32 v53, -1
        v_mov_b32 v54, -1
        v_mov_b32 v55, -1
        """)
        if noclr: A(f"s_mov_b32 s14, {OOB}")
        for k in range(3): vm.issue(f"clr{k}", f"buffer_store_dwordx4 v[52:55], v58, s[44:47], s14 offen offset:{1024*k} {cpol}")
    cur[0] = D0
    if CW in (2, 3): srd(44, "s26", "s27", "0x40000000" if (debug or stamps) else WSN)
    if CW == 2: clears()
    for _ in range(XK): kv_next()
    for i in range(10): vm.issue(f"xs{i}", f"buffer_load_dwordx4 v[{XS+4*i}:{XS+4*i+3}], v57, s[48:51], 0 offen offset:{128*i}")
    A("s_mul_i32 s14, s77, 320")
    for i in range(5): vm.issue(f"xa{i}", f"buffer_load_dwordx4 v[{XA+4*i}:{XA+4*i+3}], v3, s[48:51], s14 offen offset:{64*i}")
    if CW == 3: clears()
    srd(36, "s10", "s11", 640 * 8192)
    A(f"""
    v_lshrrev_b32 v50, 3, v1
    v_and_b32 v50, 2, v50
    v_and_b32 v51, 7, v1
    v_xor_b32 v50, v50, v51
    v_lshlrev_b32 v50, 4, v50
    v_lshl_add_u32 v48, v56, 13, v50
    s_lshl_b32 s14, s74, 8
    s_lshr_b32 s15, s75, 2
    s_lshl_b32 s15, s15, 7
    s_add_u32 s14, s14, s15
    v_add_u32 v48, s14, v48
    v_xor_b32 v49, 64, v48
    s_mul_i32 s82, s77, {160*8192}
    s_mov_b32 s83, {L_W}
    """)
    dn = [0]
    def wq_dma():
        i = dn[0]; dn[0] += 1
        A("s_mov_b32 m0, s83"); A("s_add_u32 s83, s83, 1024")
        vm.issue(f"dq{i}", f"buffer_load_dwordx4 v{48 + (i & 1)}, s[36:39], s82 offen {wpol} lds")
        A("s_add_u32 s82, s82, 65536")
    while kvn[0] < D0:
        for _ in range(4): wq_dma()
        kv_next()
    while dn[0] < 20: wq_dma()
    setup()
    if CW == 0: clears()
    vm.wait("xs9")
    stamp(2)
    LIM = 33
    def stats():
        A("s_mov_b32 s14, 0x3f803f80")
        A(f"v_dot2_f32_bf16 v24, v{XS}, s14, 0"); A(f"v_dot2_f32_bf16 v25, v{XS+1}, s14, 0")
        for j in range(2, 40): A(f"v_dot2_f32_bf16 v{24+(j&1)}, v{XS+j}, s14, v{24+(j&1)}")
        A("v_add_f32 v24, v24, v25")
        red_hi("v_add_f32", ["v24"], ["v26"])
        A(f"v_mul_f32 v28, {f2u(-1/640)}, v24"); A("v_mov_b32 v29, v28")
        for r in range(30, 34): A(f"v_mov_b32 v{r}, 0")
        for j in range(40):
            t = 34 + 2 * (j & 3); a = 30 + 2 * (j & 1)
            A(f"v_lshlrev_b32 v{t}, 16, v{XS+j}"); A(f"v_and_b32 v{t+1}, 0xffff0000, v{XS+j}")
            A(f"v_pk_add_f32 v[{t}:{t+1}], v[{t}:{t+1}], v[28:29]")
            A(f"v_pk_fma_f32 v[{a}:{a+1}], v[{t}:{t+1}], v[{t}:{t+1}], v[{a}:{a+1}]")
        A("v_pk_add_f32 v[30:31], v[30:31], v[32:33]"); A("v_add_f32 v25, v30, v31")
        red_hi("v_add_f32", ["v25"], ["v26"])
        A(f"v_mul_f32 v24, {f2u(1/640)}, v24"); A(f"v_mul_f32 v25, {f2u(1/640)}, v25")
        ln_consts("v24", "v25", "v26", "v27")
        A("v_sub_f32 v28, 0, v24"); A("v_sub_f32 v29, 0, v24"); A("v_mov_b32 v27, v26")
    pace(capture(stats), LIM)
    vm.wait("xa4")
    def part2():
        unpack(U0, XA, 20); norm(U0, XA, 20)
        A(f"""
        v_lshrrev_b32 v50, 2, v47
        v_lshl_add_u32 v50, v46, 3, v50
        v_lshlrev_b32 v50, 7, v50
        v_and_b32 v51, 3, v47
        v_lshl_add_u32 v50, v51, 3, v50
        v_lshrrev_b32 v51, 3, v47
        v_and_b32 v52, 1, v46
        v_lshl_add_u32 v51, v52, 1, v51
        v_lshl_add_u32 v50, v51, 5, v50
        v_xor_b32 v51, 32, v50
        v_xor_b32 v52, 64, v50
        v_xor_b32 v53, 96, v50
        """)
    pace(capture(part2), LIM)
    stamp(2)
    while vm.has("dq19"): paced()
    stamp(2)
    for half in range(2):
        for i in range(5):
            for t in range(2):
                b = W0 + 8 * i + 4 * t
                A(f"ds_read_b64_tr_b16 v[{b}:{b+1}], v{50+2*half+t} offset:{L_W + 4096*i}")
                A(f"ds_read_b64_tr_b16 v[{b+2}:{b+3}], v{50+2*half+t} offset:{L_W + 4096*i + 512}")
        if kvn[0] < LIM: paced()
        A("s_waitcnt lgkmcnt(0)")
        for i in range(5):
            for t in range(2):
                b = W0 + 8 * i + 4 * t; d = 24 + 8 * half + 4 * t
                A(f"v_mfma_f32_16x16x32_bf16 v[{d}:{d+3}], v[{b}:{b+3}], v[{XA+4*i}:{XA+4*i+3}], {'0' if i == 0 else f'v[{d}:{d+3}]'}")
        if kvn[0] < LIM: paced()
    assert kvn[0] <= LIM
    if CW == 1: clears()
    A(f"""
    v_lshlrev_b32 v50, 11, v62
    v_lshrrev_b32 v51, 3, v47
    v_lshl_add_u32 v50, v51, 6, v50
    v_lshl_add_u32 v50, v46, 4, v50
    s_lshl_b32 s14, s74, 14
    s_lshl_b32 s15, s77, 9
    s_add_u32 s14, s14, s15
    s_lshr_b32 s15, s75, 2
    s_lshl_b32 s15, s15, 8
    s_add_u32 s14, s14, s15
    s_add_u32 s14, s14, {QOFF}
    v_cmp_le_u32 vcc, 8, v47
    """)
    A("v_mov_b32 v56, 0")
    vm.issue("ini", "buffer_load_dword v59, v56, s[68:71], 0 offen sc1")
    for half in range(2):
        for r in range(4): A(f"v_cndmask_b32 v{24+8*half+r}, v{24+8*half+r}, v{28+8*half+r}, vcc")
        vm.issue(f"qp{half}", f"buffer_store_dwordx4 v[{24+8*half}:{27+8*half}], v50, s[44:47], s14 offen offset:{128*half} {qpol}")
    stamp(2)
    cur[0] = DW
    while vm.has("qp1"): paced()
    def inichk(lab, v):
        A(f"v_cmp_ne_u32 vcc, 0, {v}"); A(f"s_cbranch_vccnz {lab}ok"); A("s_mov_b32 s17, 0x8000")
        A(f"{lab}:"); A(f"buffer_load_dword {v}, v56, s[68:71], 0 offen sc1"); A("s_waitcnt vmcnt(0)")
        A(f"v_cmp_ne_u32 vcc, 0, {v}"); A(f"s_cbranch_vccnz {lab}ok"); retry("s17", lab, qsleep); A(f"{lab}ok:")
    inichk("L_ini0", "v59")
    A("v_mov_b32 v51, 1"); A("s_mov_b64 exec, 1")
    vm.issue("fl", f"buffer_store_dword v51, v56, s[44:47], s22 offen {fpol}")
    A("s_mov_b64 exec, -1")
    while kvn[0] < JC: paced()
    assert not vm.has("fl"), "flag store must retire before the join"
    A("s_branch L_join")
    n0 = ns[0]
    A("L_plain:")
    kvn[0] = 0; vm.q = []; cur[0] = D; gap[0] = 0
    srd(44, "s26", "s27", "0x40000000" if (debug or stamps) else WSN)
    A(f"""
    v_lshrrev_b32 v48, 1, v1
    v_mul_u32_u24 v48, {FST}, v48
    v_and_b32 v49, 1, v1
    v_lshl_add_u32 v48, v49, 4, v48
    s_lshl_b32 s14, s2, 2
    s_add_u32 s14, s14, s3
    s_cmp_eq_u32 s14, 1
    s_cselect_b32 s83, 0, {OOB}
    s_add_u32 s82, s83, {FLG}
    v_mov_b32 v52, 0
    v_mov_b32 v53, 0
    v_mov_b32 v54, 0
    v_mov_b32 v55, 0
    v_mov_b32 v51, 1
    """)
    vm.issue("fz", f"buffer_store_dwordx4 v[52:55], v48, s[44:47], s82 offen sc1")
    for _ in range(D): kv_next()
    setup()
    paced(); assert not vm.has("fz")
    A("s_mov_b64 exec, 1")
    vm.issue("fi", f"buffer_store_dword v51, v54, s[68:71], s83 offen sc1")
    A("s_mov_b64 exec, -1")
    while kvn[0] < JC - D:
        paced()
        if kvn[0] in (D + 1, 22, 38): tl({D + 1: 38, 22: 39, 38: 40}[kvn[0]])
    A("v_mov_b32 v56, 0")
    vm.issue("ini", "buffer_load_dword v59, v56, s[68:71], 0 offen sc1")
    while kvn[0] < JC: paced()
    vm.wait("ini")
    inichk("L_ini1", "v59")
    A("L_join:")
    ns[0] = n0
    stamp(2); tl(34)
    vm.q = [f"K{j}" for j in range(JC - max(D, DW), JC)]
    cur[0] = D
    A(f"""
    v_lshrrev_b32 v56, 1, v1
    v_mul_u32_u24 v56, {FST}, v56
    v_and_b32 v49, 1, v1
    v_lshl_add_u32 v56, v49, 4, v56
    s_mov_b32 s15, {FLG}
    """)
    def flagchk():
        A("v_and_b32 v48, v48, v49"); A("v_and_b32 v50, v50, v51"); A("v_and_b32 v48, v48, v50")
        A("v_cmp_ne_u32 vcc, 1, v48"); A("s_cbranch_vccz L_cntok")
    vm.issue("cnt", f"buffer_load_dwordx4 v[48:51], v56, s[44:47], s15 offen sc1")
    for _ in range(D): paced()
    vm.wait("cnt")
    flagchk()
    A("s_mov_b32 s17, 0x8000")
    A("L_cntspin:")
    A("buffer_load_dwordx4 v[48:51], v56, s[44:47], s15 offen sc1"); A("s_waitcnt vmcnt(0)")
    flagchk()
    retry("s17", "L_cntspin", qsleep)
    A("L_cntok:")
    tl(35)
    vm.issue("q0", f"buffer_load_dwordx4 v[24:27], v63, s[44:47], s21 offen {qpol}")
    vm.issue("q1", f"buffer_load_dwordx4 v[28:31], v63, s[44:47], s21 offen offset:16 {qpol}")
    while kvn[0] < I0: paced()
    tl(36)
    vm.wait("q1")
    tl(37)
    def qred():
        red_sw("v_add_f32", [f"v{24+r}" for r in range(8)], [f"v{32+r}" for r in range(8)])
        for r in range(4): A(f"v_cvt_pk_bf16_f32 v{8+r}, v{24+2*r}, v{25+2*r}")
    interleave(capture(qred), [paced] * 2)
    stamp(3)
    def dots(i, sl):
        b = slot(sl)
        if sl >= 48:
            b = 48 + 4 * (i & 1)
            for r in range(4): A(f"v_accvgpr_read_b32 v{b+r}, a{4*(sl-48)+r}")
        A(f"v_dot2_f32_bf16 v{24+i}, v{b}, v8, 0")
        for r in range(1, 4): A(f"v_dot2_f32_bf16 v{24+i}, v{b+r}, v{8+r}, v{24+i}")
    def kreduce():
        for u in range(8): A(f"v_add_f32_dpp v{24+u}, v{24+u}, v{24+u} row_ror:8 row_mask:0xf bank_mask:0x3")
        for u in range(8): A(f"v_add_f32_dpp v{24+u}, v{32+u}, v{32+u} row_ror:8 row_mask:0xf bank_mask:0xc")
        for u in range(4): A(f"v_add_f32_dpp v{24+u}, v{24+u}, v{24+u} row_shl:4 row_mask:0xf bank_mask:0x5")
        for u in range(4): A(f"v_add_f32_dpp v{24+u}, v{28+u}, v{28+u} row_shr:4 row_mask:0xf bank_mask:0xa")
        A("""
        v_cndmask_b32 v28, v24, v26, s[10:11]
        v_cndmask_b32 v29, v26, v24, s[10:11]
        v_cndmask_b32 v30, v25, v27, s[10:11]
        v_cndmask_b32 v31, v27, v25, s[10:11]
        v_add_f32_dpp v28, v29, v28 quad_perm:[2,3,0,1] row_mask:0xf bank_mask:0xf
        v_add_f32_dpp v30, v31, v30 quad_perm:[2,3,0,1] row_mask:0xf bank_mask:0xf
        v_cndmask_b32 v24, v28, v30, s[12:13]
        v_cndmask_b32 v25, v30, v28, s[12:13]
        v_add_f32_dpp v24, v25, v24 quad_perm:[1,0,3,2] row_mask:0xf bank_mask:0xf
        """)
        rbf("v24", "v25"); A("v_mul_f32 v24, s16, v24"); rbf("v24", "v25")
        A("ds_write_b32 v44, v24"); A("v_add_u32 v44, 256, v44")
    VLR, VWO, VGR, VPV, VLD, VG0, VAC, VBI, VC0, VZ, VLV = 150, 151, 152, 153, 154, 155, 157, 158, 159, 160, 162
    NP = len(PP)
    def ctl_init():
        A(f"""
        v_lshlrev_b32 v{VLR}, 2, v1
        v_mov_b32 v{VWO}, {OOB}
        v_cmp_gt_u32 vcc, 33, v1
        v_cndmask_b32 v{VLR}, v{VWO}, v{VLR}, vcc
        v_lshlrev_b32 v{VGR}, 12, v1
        v_add_u32 v{VGR}, {GLB}, v{VGR}
        v_cmp_gt_u32 vcc, 8, v1
        v_cndmask_b32 v{VGR}, v{VWO}, v{VGR}, vcc
        v_mov_b32 v{VZ}, 0
        v_cmp_gt_u32 vcc, 1, v1
        v_cndmask_b32 v{VWO}, v{VWO}, v{VZ}, vcc
        v_mov_b32 v{VPV}, {NP * NS}
        v_mov_b32 v{VAC}, 0
        v_mov_b32 v{VG0+1}, 0
        v_mov_b32 v{VBI}, 0
        v_mov_b32 v{VC0}, {16 * NS}
        s_mov_b32 s77, {NS}
        s_mov_b32 s4, {L0 // 2}
        """)
    def first_post():
        A(f"""
        s_cmp_eq_u32 s3, 0
        s_cselect_b32 s14, s25, {OOB}
        s_cselect_b32 s15, s73, 99
        s_cmp_eq_u32 s15, {LR if glob else 98}
        s_cselect_b32 s15, s27, {OOB}
        v_mov_b32 v56, 0
        v_mov_b32 v57, {NP * NS}
        v_mov_b32 v58, {(NS - 1) | 1}
        s_mov_b64 exec, 1
        """)
        vm.issue("p0", "buffer_store_dword v57, v56, s[44:47], s14 offen")
        vm.issue("p1", "buffer_store_dword v58, v56, s[44:47], s15 offen sc1")
        A("s_mov_b64 exec, -1")
    def sum8(v):
        for m in ("quad_perm:[1,0,3,2]", "quad_perm:[2,3,0,1]", "row_half_mirror"): A(f"v_add_u32_dpp {v}, {v}, {v} {m} row_mask:0xf bank_mask:0xf")
    lab = [0]
    def ctl_pre(i, var):
        if stamps & 4:
            if i == 0: A("s_memrealtime s[86:87]")
            if i == 1: A("s_waitcnt lgkmcnt(0)"); A("s_mov_b32 m0, s77"); A("v_writelane_b32 v61, s86, m0")
        if not ctl: return
        if var == 0:
            if i in CP: A(f"ds_read_b64 v[{VLV}:{VLV+1}], v{VZ} offset:{L_CT}")
            if i - 1 in CP:
                A("s_waitcnt lgkmcnt(0)"); A(f"v_readfirstlane_b32 s4, v{VLV}"); A(f"v_readfirstlane_b32 s79, v{VLV+1}")
                A("s_lshl_b32 s7, s77, 4"); A("s_sub_u32 s79, s79, s7")
                if i - 1 + C2: A(f"s_sub_u32 s79, s79, {i - 1 + C2}")
                A(f"s_mul_i32 s79, s79, {G2}"); A("s_add_u32 s4, s4, s79"); A(f"s_max_i32 s4, s4, {LO}"); A(f"s_min_i32 s4, s4, {HI}")
                if CP.index(i - 1) & 1: A("s_add_u32 s4, s4, 1")
                A("s_lshr_b32 s4, s4, 1")
            return
        if var == 2:
            if i == 0:
                lab[0] += 1; L = f"L_odd{lab[0]}"
                A(f"v_add_u32 v{VAC}, v{VAC}, v{VG0+1}")
                A(f"s_mov_b32 s7, {OOB}"); A(f"s_mov_b32 s23, {OOB}"); A("s_bitcmp1_b32 s77, 0"); A(f"s_cbranch_scc1 {L}")
                A("s_mov_b32 m0, s72"); A(f"v_readlane_b32 s7, v{VAC}, m0")
                sum8(f"v{VAC}")
                A(f"v_readfirstlane_b32 s79, v{VAC}"); A("s_lshl_b32 s7, s7, 3"); A("s_sub_u32 s79, s79, s7"); A(f"v_mov_b32 v{VAC}, 0")
                A(f"s_sub_u32 s79, s79, {CG}"); A(f"s_ashr_i32 s79, s79, {GGS}"); A(f"s_max_i32 s79, s79, {GLO}"); A(f"s_min_i32 s79, s79, {GHI}")
                A(f"v_mov_b32 v{VBI}, s79"); A("s_add_u32 s79, s77, 1"); A(f"v_mov_b32 v{VLV}, s79"); A("s_mov_b32 s7, s27"); A("s_mov_b32 s23, s6")
                A(f"{L}:")
                vm.issue("gp", f"buffer_store_dword v{VLV}, v{VWO}, s[44:47], s7 offen sc1")
                vm.issue("gb", f"buffer_store_dword v{VBI}, v{VWO}, s[44:47], s23 offen")
            if i == RP[0] + DH + 1: A(f"v_add_u32 v{VAC}, v{VAC}, v{VG0}")
            if i in RP: vm.issue(f"gr{i}", f"buffer_load_dword v{VG0 + RP.index(i)}, v{VGR}, s[44:47], 0 offen sc1")
        if i in PP:
            A(f"v_add_u32 v{VPV}, 1, v{VPV}"); vm.issue(f"lp{i}", f"buffer_store_dword v{VPV}, v{VWO}, s[44:47], s25 offen")
        if i == RI: vm.issue("lr", f"buffer_load_dword v{VLD}, v{VLR}, s[44:47], s24 offen sc1")
        if i == RI + DH + 1:
            assert not vm.has("lr")
            own = sum(1 for p in PP if p <= RI)
            A(f"v_readlane_b32 s7, v{VLD}, 32")
            sum8(f"v{VLD}"); A(f"v_add_u32_dpp v{VLD}, v{VLD}, v{VLD} row_mirror row_mask:0xf bank_mask:0xf")
            A(f"s_mul_i32 s23, s77, {32 * NP}")
            A(f"v_readlane_b32 s79, v{VLD}, 0"); A(f"v_readlane_b32 s4, v{VLD}, 16")
            A("s_add_u32 s79, s79, s4"); A("s_sub_u32 s79, s79, s23"); A(f"s_sub_u32 s79, s79, {32 * own + C0}")
            A(f"s_ashr_i32 s79, s79, {GSH}"); A("s_add_u32 s79, s79, s7"); A(f"s_add_u32 s79, s79, {L0}")
            A(f"s_max_i32 s79, s79, {LO}"); A(f"s_min_i32 s79, s79, {HI}")
            A(f"v_mov_b32 v{VLD}, s79"); A(f"ds_write_b32 v{VZ}, v{VLD} offset:{L_CT}")
            A("s_and_b32 s4, s77, 1"); A("s_add_u32 s4, s4, s79"); A("s_lshr_b32 s4, s4, 1")
    def ctl_post(i, var):
        if ctl and var and i % PL == PL - 1:
            A(f"v_add_u32 v{VC0}, {PL}, v{VC0}"); A(f"ds_write_b32 v{VZ}, v{VC0} offset:{L_CT + 4}")
        if i == 15: A("s_add_u32 s77, s77, 1")
    assert max(max(PP), RI, max(RP)) + DH <= 15 and len(RP) == 2
    def strict(pref, j):
        lab[0] += 1; L = f"L_sk{lab[0]}"; i = (j - DH) % 16
        n4 = vm.count(f"{pref}{j - DB}"); n5 = vm.count(f"{pref}{j - DB - 1}")
        A(f"s_cmp_gt_u32 s4, {16 + TH[i]} ;opt"); A(f"s_cbranch_scc1 {L} ;opt")
        A(f"s_cmp_gt_u32 s4, {TH[i]} ;opt"); A(f"s_cbranch_scc1 {L}m ;opt")
        A(f"s_waitcnt vmcnt({n4}) ;opt"); A(f"{L}m:")
        if n5 is not None: A(f"s_waitcnt vmcnt({n5}) ;opt")
        A(f"{L}:")
    def variants(tag, body):
        st = (kvn[0], list(vm.q))
        A("s_cmp_lg_u32 s3, 0"); A(f"s_cbranch_scc1 L_{tag}0")
        A(f"s_cmp_lg_u32 s73, {LR if glob else 98}"); A(f"s_cbranch_scc1 L_{tag}1")
        for var in (2, 1, 0):
            kvn[0], vm.q = st[0], list(st[1])
            A(f"L_{tag}{var}:"); body(var, f"{tag}{var}")
            if var: A(f"s_branch L_{tag}end")
        A(f"L_{tag}end:")
    C = 16 * NS
    first_post()
    nis = C + DH - kvn[0]; isd = 0
    for j in range(C):
        vm.wait(f"K{j}")
        if j & 15 == 0: tl(j >> 4)
        dots(j & 15, j)
        while isd < (j + 1) * nis // C:
            paced(); isd += 1
        if j & 15 == 15: kreduce()
        if j == 40: ctl_init()
    assert kvn[0] == C + DH
    assert not vm.has("p1")
    stamp(2)
    nwo = -(-40 // (16 - NS))
    WOS = {3: (0, 3, 6), 4: (0, 2, 4, 6), 5: (0, 2, 4, 6, 7)}[nwo]
    assert max(WOS) + DH <= 15
    A(f"s_mov_b32 s81, {NS}"); A(f"s_mov_b32 s14, {OOB if nowo else 0}"); A("s_mov_b32 s15, 0"); A("s_mov_b32 s17, 0")
    WT = 128
    vm.q = [f"K{j}" for j in range(DH)]
    def kloop(var, T):
        A(f"L_lp{T}:")
        for i in range(16):
            vm.wait(f"K{i}")
            dots(i, i)
            if i - DH in WOS:
                assert not vm.has(f"wo{i-DH}")
                t = WT + 4 * WOS.index(i - DH)
                A("s_set_gpr_idx_on s17, gpr_idx(DST)")
                for r in range(4): A(f"v_accvgpr_write_b32 a{r}, v{t+r}")
                A("s_set_gpr_idx_off"); A("s_add_u32 s17, s17, 4")
            ctl_pre(i, var)
            if i in WOS:
                t = WT + 4 * WOS.index(i)
                vm.issue(f"wo{i}", f"buffer_load_dwordx4 v[{t}:{t+3}], v60, s[40:43], s14 offen {wpol}")
                A("s_add_u32 s14, s14, 256"); A("s_add_u32 s15, s15, 1"); A("s_cmp_eq_u32 s15, 5")
                A("s_cselect_b32 s23, 3840, 0"); A("s_cselect_b32 s15, 0, s15"); A("s_add_u32 s14, s14, s23")
                A("s_cmp_ge_u32 s14, 40960"); A(f"s_cselect_b32 s14, {OOB}, s14")
            if (i + DH) % 16 == 0:
                A("s_cmp_lg_u32 s81, 15"); A(f"s_cbranch_scc1 L_nosw{T}")
                A("s_mov_b32 s28, s8"); A("s_mov_b32 s29, s9"); A("s_mov_b32 s80, 0")
                A(f"L_nosw{T}:")
            j = i + DH
            strict("K", j)
            vm.issue(f"K{j}", kv_text(j % 16, j))
            if j & 3 == 3: A("s_add_u32 s80, s80, 16384")
            ctl_post(i, var)
        assert vm.q == [f"K{16+j}" for j in range(DH)], vm.q
        kreduce()
        A("s_add_u32 s81, s81, 1"); A("s_cmp_lt_u32 s81, 16"); A(f"s_cbranch_scc1 L_lp{T}")
    variants("k", kloop)
    stamp()
    vm.q = [f"V{j}" for j in range(DH)]; kvn[0] = DH
    vnext = lambda: kv_next("V")
    A("v_and_b32 v56, 7, v1"); A("v_lshlrev_b32 v56, 3, v56")
    vm.issue("xr", "buffer_load_dwordx2 v[62:63], v56, s[48:51], s20 offen")
    A("v_subrev_u32 v44, 4096, v44")
    A("s_waitcnt lgkmcnt(0)")
    for i in range(16): A(f"ds_read_b32 v{24+i}, v44 offset:{256*i}")
    A(f"s_mov_b32 s17, {f2u(1.4426950408889634)}")
    assert FI in (0, 4)
    A(f"""
    s_cmp_eq_u32 s19, 3
    s_cbranch_scc1 L_pdown
    v_lshrrev_b32 v56, 5, v1
    v_and_b32 v57, 3, v1
    v_xor_b32 v56, v56, v57
    v_lshrrev_b32 v57, 2, v1
    v_mul_u32_u24 v60, 3456, v57
    v_lshl_add_u32 v60, v56, 4, v60
    s_lshl_b32 s14, s18, 6
    v_add_u32 v60, s14, v60
    s_mul_i32 s60, s3, {64*3456}
    s_mov_b32 s62, {16*3456}
    s_lshl_b32 s63, s3, 12
    s_add_u32 s63, s63, {L_W}
    s_cmp_eq_u32 s19, 1
    s_cselect_b32 s78, {0 if noffn else FI}, 0
    s_mov_b32 s37, s78
    s_mov_b32 s61, 32
    s_branch L_pdone
    L_pdown:
    v_lshrrev_b32 v60, 1, v1
    v_mul_u32_u24 v60, 1280, v60
    v_and_b32 v56, 1, v1
    v_lshl_add_u32 v60, v56, 4, v60
    s_lshl_b32 s14, s18, 5
    v_add_u32 v60, s14, v60
    s_mul_i32 s60, s3, {32*1280}
    s_mov_b32 s62, {128*1280}
    s_mul_i32 s63, s3, 14336
    s_add_u32 s63, s63, {L_W}
    s_mov_b32 s78, {0 if noffn else DI}
    s_mov_b32 s37, 0
    s_mov_b32 s61, 0
    L_pdone:
    s_waitcnt lgkmcnt(0)
    """)
    def sm1():
        A("v_max3_f32 v40, v24, v25, v26")
        for i in range(3, 15, 2): A(f"v_max3_f32 v40, v40, v{24+i}, v{25+i}")
        A("v_max_f32 v40, v40, v39")
        red64("v_max_f32", "v40", "v41")
        for i in range(16):
            A(f"v_sub_f32 v{24+i}, v{24+i}, v40")
        for i in range(16): A(f"v_mul_f32 v{24+i}, s17, v{24+i}")
        for i in range(16): A(f"v_exp_f32 v{24+i}, v{24+i}")
        A("v_add_f32 v41, v24, v25"); A("v_add_f32 v42, v26, v27")
        for i in range(4, 16, 2): A(f"v_add_f32 v41, v41, v{24+i}"); A(f"v_add_f32 v42, v42, v{25+i}")
        A("v_add_f32 v41, v41, v42")
        red64("v_add_f32", "v41", "v42")
        A(f"s_lshl_b32 s14, s3, 3"); A("v_mov_b32 v56, s14"); A(f"ds_write_b64 v56, v[40:41] offset:{L_ST}")
    e1 = (E + 1) // 2
    interleave(capture(sm1), [vnext] * e1)
    A(f"""
    s_waitcnt lgkmcnt(0)
    s_barrier
    v_mov_b32 v56, 0
    ds_read_b128 v[48:51], v56 offset:{L_ST}
    ds_read_b128 v[52:55], v56 offset:{L_ST+16}
    """)
    if E > e1: vnext()
    A("s_waitcnt lgkmcnt(0)")
    def sm2():
        A("v_max3_f32 v42, v48, v50, v52"); A("v_max_f32 v42, v42, v54")
        for j in range(4): A(f"v_sub_f32 v{48+2*j}, v{48+2*j}, v42")
        A("v_sub_f32 v40, v40, v42")
        for j in range(4): A(f"v_mul_f32 v{48+2*j}, s17, v{48+2*j}")
        A("v_mul_f32 v40, s17, v40")
        for j in range(4): A(f"v_exp_f32 v{48+2*j}, v{48+2*j}")
        A("v_exp_f32 v40, v40")
        A("v_mul_f32 v43, v48, v49"); A("v_fmac_f32 v43, v50, v51"); A("v_fmac_f32 v43, v52, v53"); A("v_fmac_f32 v43, v54, v55")
        A("v_rcp_f32 v41, v43")
        A("v_fma_f32 v42, -v43, v41, 1.0"); A("v_fma_f32 v41, v42, v41, v41"); A("v_mul_f32 v40, v40, v41")
        for i in range(16): A(f"v_mul_f32 v{24+i}, v{24+i}, v40")
        for i in range(16): A(f"v_cvt_pk_bf16_f32 v{24+i}, v{24+i}, v{24+i}")
        for i in range(2, 16): A(f"ds_write_b32 v44, v{24+i} offset:{256*i}")
        A("v_add_u32 v44, 512, v44")
        A("v_mov_b32 v42, v25")
    interleave(capture(sm2), [vnext] * (E - e1 - 1 if E > e1 else 0))
    def stage(k):
        if k == 0:
            A(f"s_sub_u32 s5, s81, {FS}"); A("s_cmp_lt_u32 s5, s78")
            A(f"s_cselect_b32 m0, s63, {L_OP}"); A(f"s_cselect_b32 s23, s60, {OOB}")
            vm.issue("st0", f"buffer_load_dwordx4 v60, s[52:55], s23 offen {wpol} lds")
        else:
            A("s_add_u32 s23, s63, 40960")
            A("s_cmp_lt_u32 s5, s37")
            A(f"s_cselect_b32 m0, s23, {L_OP}"); A(f"s_cselect_b32 s23, s60, {OOB}")
            vm.issue("st1", f"buffer_load_dwordx4 v60, s[56:59], s23 offen {wpol} lds")
            A("s_cmp_lt_u32 s5, s78")
            A("s_cselect_b32 s23, s62, 0"); A("s_cselect_b32 s82, 1024, 0"); A("s_cselect_b32 s83, s61, 0")
            A("s_add_u32 s60, s60, s23"); A("s_add_u32 s63, s63, s82"); A("v_xor_b32 v60, s83, v60")
    assert max(GS) + DH <= 15
    def vpart(var, T):
        buildA(0, "v24", 0)
        for i in range(16):
            ab = 16 + 4 * (i & 1)
            if vm.has(f"V{i}"): vm.wait(f"V{i}")
            A(f"v_mfma_f32_16x16x32_bf16 v[12:15], v[{ab}:{ab+3}], v[{slot(i)}:{slot(i)+3}], {'0' if i == 0 else 'v[12:15]'}")
            ctl_pre(i, var)
            if kvn[0] == i + DH:
                strict("V", kvn[0]); vnext()
            ctl_post(i, var)
            if i < 15: buildA((i + 1) & 1, "v24", i + 1)
        assert kvn[0] == 16 + DH
        assert vm.q == [f"V{16+j}" for j in range(DH)], vm.q
        A("s_mov_b32 s81, 1")
        vm.q = [f"V{j}" for j in range(DH)]
        A(f"L_lp{T}:")
        A("s_waitcnt lgkmcnt(0)")
        A("v_mov_b32 v40, v42")
        A("ds_read_b32 v42, v44"); A("v_add_u32 v44, 256, v44")
        buildA(0, "v40", 0)
        for i in range(16):
            ab = 16 + 4 * (i & 1)
            vm.wait(f"V{i}")
            A(f"v_mfma_f32_16x16x32_bf16 v[12:15], v[{ab}:{ab+3}], v[{slot(i)}:{slot(i)+3}], v[12:15]")
            ctl_pre(i, var)
            if i in GS: stage(GS.index(i))
            j = i + DH
            strict("V", j)
            vm.issue(f"V{j}", kv_text(j % 16, j))
            if j & 3 == 3: A("s_add_u32 s80, s80, 16384")
            ctl_post(i, var)
            if i < 15: buildA((i + 1) & 1, "v40", i + 1)
        assert vm.q == [f"V{16+j}" for j in range(DH)], vm.q
        A("s_add_u32 s81, s81, 1"); A("s_cmp_lt_u32 s81, 16"); A(f"s_cbranch_scc1 L_lp{T}")
    variants("v", vpart)
    stamp(1 | 8)
    if stamps & 4:
        A("s_memrealtime s[86:87]"); A("s_waitcnt lgkmcnt(0)"); A("v_writelane_b32 v61, s86, 32")
        A("s_lshl_b32 s14, s2, 10"); A("s_add_u32 s14, s14, 0x3000000"); A("v_lshlrev_b32 v145, 2, v0")
        A("buffer_store_dword v61, v145, s[44:47], s14 offen")
    A(";TAILBEGIN")
    A(f"""
    v_lshlrev_b32 v58, 5, v47
    v_and_b32 v59, 1, v46
    v_lshlrev_b32 v59, 4, v59
    v_add_u32 v58, v58, v59
    v_mov_b32 v57, v58
    v_lshrrev_b32 v59, 1, v46
    v_lshlrev_b32 v59, 9, v59
    v_add_u32 v58, v58, v59
    s_lshl_b32 s14, s3, 10
    v_add_u32 v58, s14, v58
    ds_write_b128 v58, v[12:15] offset:{L_RED}
    v_and_b32 v59, 7, v47
    v_lshlrev_b32 v59, 2, v59
    v_add_u32 v59, v59, v46
    v_lshlrev_b32 v59, 2, v59
    s_lshl_b32 s14, s3, 7
    v_add_u32 v59, s14, v59
    s_mul_i32 s14, s3, 2560
    v_add_u32 v57, s14, v57
    s_waitcnt lgkmcnt(0)
    s_barrier
    """)
    stamp(8)
    for w in range(4): A(f"ds_read_b32 v{24+w}, v59 offset:{L_RED + 1024*w}")
    A("""
    s_waitcnt lgkmcnt(0)
    v_add_f32 v24, v24, v25
    v_add_f32 v26, v26, v27
    v_add_f32 v24, v24, v26
    v_cvt_pk_bf16_f32 v40, v24, v24
    """)
    if debug:
        A("s_lshl_b32 s14, s76, 9"); A("s_add_u32 s14, s14, 0x1100000")
        A("buffer_store_dword v24, v59, s[44:47], s14 offen")
    OP0 = 128
    stamp(8)
    for t in range(8):
        buildA(t & 1, "v40", t)
        ab = 16 + 4 * (t & 1)
        for s in range(5):
            u = 5 * t + s
            A(f"v_mfma_f32_16x16x32_bf16 v[{OP0+4*s}:{OP0+3+4*s}], v[{ab}:{ab+3}], a[{4*u}:{4*u+3}], {'0' if t == 0 else f'v[{OP0+4*s}:{OP0+3+4*s}]'}")
    stamp(8)
    A("s_mov_b32 exec_hi, 0")
    for s in range(5): A(f"ds_write_b128 v57, v[{OP0+4*s}:{OP0+3+4*s}] offset:{L_OP + 512*s}")
    A("s_mov_b64 exec, -1")
    A("v_lshlrev_b32 v56, 4, v0")
    A("s_waitcnt lgkmcnt(0)")
    A("s_barrier")
    stamp(8)
    A("s_cmp_eq_u32 s3, 3"); A("s_cbranch_scc1 L_w3")
    for w in range(4): A(f"ds_read_b128 v[{24+4*w}:{27+4*w}], v56 offset:{L_OP + 2560*w}")
    A("s_mul_i32 s14, s76, 2560"); A(f"v_mov_b32 v58, {OOB}"); A("v_cmp_gt_u32 vcc, 160, v0"); A("v_cndmask_b32 v56, v58, v56, vcc")
    A("s_waitcnt lgkmcnt(0)")
    for r in (0, 2):
        A(f"v_pk_add_f32 v[{24+r}:{25+r}], v[{24+r}:{25+r}], v[{28+r}:{29+r}]"); A(f"v_pk_add_f32 v[{32+r}:{33+r}], v[{32+r}:{33+r}], v[{36+r}:{37+r}]")
    for r in (0, 2): A(f"v_pk_add_f32 v[{24+r}:{25+r}], v[{24+r}:{25+r}], v[{32+r}:{33+r}]")
    for r in range(4): A(f"v_min_u32 v{24+r}, -2, v{24+r}")
    A(f"buffer_store_dwordx4 v[24:27], v56, s[44:47], s14 offen {ppol}")
    A("L_w3:")
    stamp(1 | 8)
    A("s_cmp_eq_u32 s19, 0"); A("s_cbranch_scc1 L_fin")
    A("s_cmp_eq_u32 s19, 2"); A("s_cbranch_scc1 L_late_done")
    A("s_cmp_eq_u32 s19, 3"); A("s_cbranch_scc1 L_late_down")
    if noffn: A(f"s_mov_b32 s60, {OOB}")
    A("v_xor_b32 v59, 32, v60")
    for n in range(FI, 12):
        if n == 8: A("s_cmp_ge_u32 s3, 2"); A("s_cbranch_scc1 L_late_done")
        if n and n % 4 == 0: A(f"s_add_u32 s60, s60, {192*3456}"); A("s_add_u32 s63, s63, 12288")
        A("s_mov_b32 m0, s63"); A("s_add_u32 s23, s63, 40960")
        A(f"buffer_load_dwordx4 v{60 - (n & 1)}, s[52:55], s60 offen {wpol} lds")
        A("s_mov_b32 m0, s23"); A("s_add_u32 s63, s63, 1024")
        A(f"buffer_load_dwordx4 v{60 - (n & 1)}, s[56:59], s60 offen {wpol} lds")
        A("s_add_u32 s60, s60, s62")
    A("s_branch L_late_done")
    A("L_late_down:")
    if noffn: A(f"s_mov_b32 s60, {OOB}")
    for n in range(DI, 14):
        A("s_mov_b32 m0, s63"); A("s_add_u32 s63, s63, 1024")
        A(f"buffer_load_dwordx4 v60, s[52:55], s60 offen {wpol} lds")
        A("s_add_u32 s60, s60, s62")
    A("L_late_done:")
    A("s_cmp_eq_u32 s19, 2"); A("s_cbranch_scc1 L_reducer")
    A("s_cmp_eq_u32 s19, 3"); A("s_cbranch_scc1 L_down")
    A(f"""
    v_and_b32 v56, 7, v47
    v_mul_u32_u24 v57, 1280, v56
    v_lshrrev_b32 v58, 3, v47
    v_lshlrev_b32 v58, 6, v58
    v_lshlrev_b32 v59, 4, v46
    v_add3_u32 v57, v57, v58, v59
    s_lshl_b32 s14, s3, 7
    s_add_u32 s14, s14, {HOFF}
    s_add_u32 s15, s14, 1024
    s_cmp_lt_u32 s3, 2
    s_cselect_b32 s15, s15, {OOB}
    s_cselect_b32 s17, 1.0, 0
    s_mov_b32 s21, {f2u(-1/128)}
    s_cselect_b32 s21, {f2u(-1/192)}, s21
    s_mov_b32 s20, 0x8000
    v_and_b32 v40, 3, v47
    v_lshrrev_b32 v41, 2, v47
    v_lshrrev_b32 v42, 1, v40
    v_lshlrev_b32 v42, 5, v42
    v_lshlrev_b32 v43, 3, v46
    v_add3_u32 v41, v41, v42, v43
    v_lshlrev_b32 v41, 6, v41
    v_and_b32 v40, 1, v40
    v_lshl_add_u32 v41, v40, 3, v41
    v_lshl_add_u32 v41, v46, 4, v41
    s_lshl_b32 s22, s3, 12
    s_add_u32 s22, s22, {L_W}
    v_add_u32 v40, s22, v41
    v_xor_b32 v41, 16, v40
    v_xor_b32 v42, 32, v40
    v_xor_b32 v43, 48, v40
    """)
    WB, AC = 160, 128
    def wreg(i, m, s): return WB + 4 * (8 * i + 4 * m + s)
    def trblk(i):
        for m in range(2):
            for s in range(4):
                b = wreg(i, m, s); off = m * 40960 + i * 16384
                if off + 256 > 65535:
                    assert i == 2 and m == 1
                    A(f"ds_read_b64_tr_b16 v[{b}:{b+1}], v{48+s} offset:{i*16384}"); A(f"ds_read_b64_tr_b16 v[{b+2}:{b+3}], v{48+s} offset:{i*16384+256}")
                else:
                    A(f"ds_read_b64_tr_b16 v[{b}:{b+1}], v{40+s} offset:{off}"); A(f"ds_read_b64_tr_b16 v[{b+2}:{b+3}], v{40+s} offset:{off+256}")
    for t in range(4): A(f"v_add_u32 v{48+t}, 40960, v{40+t}")
    if FI: trblk(0)
    A(f"""
    v_lshlrev_b32 v56, 5, v56
    s_lshl_b32 s22, s3, 3
    v_add_u32 v58, s22, v56
    v_lshrrev_b32 v59, 1, v46
    v_lshlrev_b32 v59, 8, v59
    v_and_b32 v60, 1, v46
    v_lshlrev_b32 v60, 4, v60
    v_add3_u32 v59, v59, v56, v60
    s_lshl_b32 s22, s3, 9
    v_add_u32 v59, s22, v59
    v_and_b32 v60, 7, v1
    v_lshlrev_b32 v60, 5, v60
    v_lshrrev_b32 v61, 3, v1
    v_lshl_add_u32 v60, v61, 2, v60
    s_lshl_b32 s22, s3, 12
    v_add_u32 v60, s22, v60
    """)
    def hpoll():
        A(f"buffer_load_dwordx4 v[64:67], v57, s[44:47], s14 offen {lpol}")
        A(f"buffer_load_dwordx4 v[68:71], v57, s[44:47], s14 offen offset:512 {lpol}")
        A(f"buffer_load_dwordx4 v[72:75], v57, s[44:47], s15 offen {lpol}")
    hpoll()
    A("s_waitcnt vmcnt(3)")
    for i in range(1 if FI else 0, 3): trblk(i)
    A("s_branch L_hchk")
    A("L_hpoll:")
    hpoll()
    A("L_hchk:")
    A("s_waitcnt vmcnt(0)")
    sentinel(list(range(64, 76)), "v61")
    A("s_cbranch_vccz L_hok")
    retry("s20", "L_hpoll")
    A("L_hok:")
    stamp(1 | 16)
    H0 = 80
    unpack(H0, 64, 12)
    A(f"v_pk_add_f32 v[24:25], v[{H0}:{H0+1}], v[{H0+2}:{H0+3}]"); A(f"v_pk_add_f32 v[26:27], v[{H0+4}:{H0+5}], v[{H0+6}:{H0+7}]")
    for j in range(4, 12, 2):
        A(f"v_pk_add_f32 v[24:25], v[24:25], v[{H0+2*j}:{H0+2*j+1}]"); A(f"v_pk_add_f32 v[26:27], v[26:27], v[{H0+2*j+2}:{H0+2*j+3}]")
    A("v_pk_add_f32 v[24:25], v[24:25], v[26:27]"); A("v_add_f32 v24, v24, v25")
    red_hi("v_add_f32", ["v24"], ["v26"])
    A("v_mul_f32 v28, s21, v24"); A("v_mul_f32 v29, s21, v24")
    for r in range(30, 36): A(f"v_mov_b32 v{r}, 0")
    for j in range(12):
        t = 36 + 2 * (j & 1); a = (30 + 2 * (j & 1)) if j < 8 else 34
        A(f"v_pk_add_f32 v[{t}:{t+1}], v[{H0+2*j}:{H0+2*j+1}], v[28:29]")
        A(f"v_pk_fma_f32 v[{a}:{a+1}], v[{t}:{t+1}], v[{t}:{t+1}], v[{a}:{a+1}]")
    A("v_pk_add_f32 v[30:31], v[30:31], v[32:33]"); A("v_add_f32 v25, v30, v31"); A("v_add_f32 v34, v34, v35"); A("v_fmac_f32 v25, s17, v34")
    red_hi("v_add_f32", ["v25"], ["v26"])
    stamp(16)
    A(f"""
    s_mov_b64 exec, 0xff
    ds_write_b64 v58, v[24:25] offset:{L_ST + 64}
    s_mov_b64 exec, -1
    s_waitcnt lgkmcnt(0)
    s_barrier
    ds_read_b128 v[28:31], v56 offset:{L_ST + 64}
    ds_read_b128 v[32:35], v56 offset:{L_ST + 80}
    s_waitcnt lgkmcnt(0)
    """)
    stamp(16)
    chan([192.0, 192.0, 128.0, 128.0])
    norm(H0, 64, 12)
    stamp(16)
    for i in range(3):
        if i == 2: A("s_cmp_ge_u32 s3, 2"); A("s_cbranch_scc1 L_no3")
        for m in range(2):
            for s in range(4):
                d = AC + 4 * (4 * m + s); bb = wreg(i, m, s)
                A(f"v_mfma_f32_16x16x32_bf16 v[{d}:{d+3}], v[{64+4*i}:{67+4*i}], v[{bb}:{bb+3}], {'0' if i == 0 else f'v[{d}:{d+3}]'}")
    A("L_no3:")
    stamp(16)
    A("s_mov_b32 exec_lo, 0x00ff00ff"); A("s_mov_b32 exec_hi, 0xff00ff00")
    for m in range(2):
        for s in range(4):
            d = AC + 4 * (4 * m + s)
            A(f"ds_write_b128 v59, v[{d}:{d+3}] offset:{L_GR + 4096*s + 2048*m}")
    A("s_mov_b64 exec, -1"); A("s_waitcnt lgkmcnt(0)"); A("s_barrier")
    stamp(16)
    for p in range(16): A(f"ds_read_b32 v{64+p}, v60 offset:{L_GR + 256*p}")
    A("s_waitcnt lgkmcnt(0)")
    for base in (64, 72):
        A(f"v_pk_add_f32 v[{base}:{base+1}], v[{base}:{base+1}], v[{base+4}:{base+5}]"); A(f"v_pk_add_f32 v[{base+2}:{base+3}], v[{base+2}:{base+3}], v[{base+6}:{base+7}]")
    for base in (64, 72): A(f"v_pk_add_f32 v[{base}:{base+1}], v[{base}:{base+1}], v[{base+2}:{base+3}]")
    for base in (64, 72): A(f"v_add_f32 v{base}, v{base}, v{base+1}")
    rbf("v64", "v65"); rbf("v72", "v73")
    c0 = -2.0 * 0.7978845608028654 * 1.4426950408889634
    A(f"""
    v_mul_f32 v65, v64, v64
    v_mul_f32 v65, {f2u(0.044715)}, v65
    v_fma_f32 v65, v65, v64, v64
    v_mul_f32 v65, {f2u(c0)}, v65
    v_exp_f32 v65, v65
    v_add_f32 v65, 1.0, v65
    v_rcp_f32 v65, v65
    v_mul_f32 v64, v64, v65
    """)
    rbf("v64", "v66")
    A(f"""
    v_mul_f32 v64, v64, v72
    v_mov_b32_dpp v65, v64 quad_perm:[1,0,3,2] row_mask:0xf bank_mask:0xf
    v_cvt_pk_bf16_f32 v66, v64, v65
    v_min_u32 v66, -2, v66
    v_lshlrev_b32 v57, 1, v1
    s_lshl_b32 s14, s18, 2
    s_add_u32 s14, s14, s3
    s_lshl_b32 s14, s14, 7
    s_mov_b32 exec_lo, 0x55555555
    s_mov_b32 exec_hi, 0x55555555
    buffer_store_dword v66, v57, s[32:35], s14 offen {ppol}
    s_mov_b64 exec, -1
    """)
    stamp(1 | 16)
    A("s_branch L_fin")
    A("L_reducer:")
    n_keep = ns[0]
    ns[0] -= 2 if stamps & 1 else 0
    A(f"""
    v_lshrrev_b32 v56, 3, v1
    v_mul_u32_u24 v56, 2560, v56
    v_and_b32 v57, 7, v1
    v_lshlrev_b32 v58, 4, v57
    v_add_u32 v56, v56, v58
    s_mul_i32 s14, s72, {32*2560 - 2560}
    s_lshl_b32 s15, s20, 1
    s_add_u32 s14, s14, s15
    s_add_u32 s15, s14, {8*2560}
    s_add_u32 s17, s14, {16*2560}
    s_add_u32 s19, s14, {24*2560}
    s_mov_b32 s21, 0x8000
    L_rpoll:
    buffer_load_dwordx4 v[64:67], v56, s[44:47], s14 offen {lpol}
    buffer_load_dwordx4 v[68:71], v56, s[44:47], s15 offen {lpol}
    buffer_load_dwordx4 v[72:75], v56, s[44:47], s17 offen {lpol}
    buffer_load_dwordx4 v[76:79], v56, s[44:47], s19 offen {lpol}
    s_waitcnt vmcnt(0)
    """)
    sentinel(list(range(64, 80)), "v58")
    A("s_cbranch_vccz L_rok")
    retry("s21", "L_rpoll")
    A("L_rok:")
    for r in (0, 2):
        A(f"v_pk_add_f32 v[{64+r}:{65+r}], v[{64+r}:{65+r}], v[{68+r}:{69+r}]"); A(f"v_pk_add_f32 v[{72+r}:{73+r}], v[{72+r}:{73+r}], v[{76+r}:{77+r}]")
    for r in (0, 2): A(f"v_pk_add_f32 v[{64+r}:{65+r}], v[{64+r}:{65+r}], v[{72+r}:{73+r}]")
    red_hi("v_add_f32", [f"v{64+r}" for r in range(4)], [f"v{68+r}" for r in range(4)])
    A("""
    v_cvt_pk_bf16_f32 v68, v64, v65
    v_cvt_pk_bf16_f32 v69, v66, v67
    v_lshlrev_b32 v70, 16, v62
    v_and_b32 v71, 0xffff0000, v62
    v_lshlrev_b32 v72, 16, v63
    v_and_b32 v73, 0xffff0000, v63
    v_lshlrev_b32 v64, 16, v68
    v_and_b32 v65, 0xffff0000, v68
    v_lshlrev_b32 v66, 16, v69
    v_and_b32 v67, 0xffff0000, v69
    v_pk_add_f32 v[64:65], v[64:65], v[70:71]
    v_pk_add_f32 v[66:67], v[66:67], v[72:73]
    v_cvt_pk_bf16_f32 v68, v64, v65
    v_cvt_pk_bf16_f32 v69, v66, v67
    v_min_u32 v68, -2, v68
    v_min_u32 v69, -2, v69
    v_lshlrev_b32 v57, 3, v57
    """)
    A(f"s_add_u32 s14, s20, {HOFF}")
    A("s_mov_b64 exec, 0xff")
    A(f"buffer_store_dwordx2 v[68:69], v57, s[44:47], s14 offen {ppol}")
    A("s_mov_b64 exec, -1")
    stamp()
    A("s_branch L_fin")
    A("L_down:")
    A(f"""
    v_lshlrev_b32 v57, 7, v46
    v_lshl_add_u32 v57, v47, 4, v57
    s_lshl_b32 s14, s3, 9
    v_add_u32 v57, s14, v57
    v_mov_b32 v58, {OOB}
    v_cmp_gt_u32 vcc, 8, v47
    v_cndmask_b32 v57, v58, v57, vcc
    v_lshrrev_b32 v56, 3, v1
    v_mul_u32_u24 v60, 1280, v56
    v_and_b32 v59, 7, v1
    v_lshl_add_u32 v60, v59, 2, v60
    s_lshl_b32 s21, s18, 5
    s_add_u32 s22, s21, {HOFF}
    v_lshrrev_b32 v41, 2, v47
    v_lshl_add_u32 v41, v46, 3, v41
    v_lshlrev_b32 v41, 5, v41
    v_and_b32 v42, 3, v47
    v_lshl_add_u32 v41, v42, 3, v41
    s_mul_i32 s14, s3, 14336
    s_add_u32 s14, s14, {L_W}
    v_add_u32 v41, s14, v41
    v_lshlrev_b32 v58, 5, v47
    v_lshl_add_u32 v58, v46, 4, v58
    s_lshl_b32 s14, s3, 9
    v_add_u32 v58, s14, v58
    v_lshlrev_b32 v59, 6, v59
    v_lshl_add_u32 v59, v56, 2, v59
    s_waitcnt vmcnt(0)
    """)
    for j in range(14):
        A(f"ds_read_b64_tr_b16 v[{192+4*j}:{193+4*j}], v41 offset:{1024*j}")
        A(f"ds_read_b64_tr_b16 v[{194+4*j}:{195+4*j}], v41 offset:{1024*j + 128}")
    A("s_mov_b32 s20, 0x8000"); A("s_mov_b32 s15, 4096"); A("s_mov_b32 s17, 8192"); A("s_mov_b32 s19, 12288")
    A("s_mov_b32 s23, 16384"); A("s_mov_b32 s24, 20480"); A("s_mov_b32 s25, 24576")
    A("L_apoll:")
    so = ["0", "s15", "s17", "s19", "s23", "s24", "s25"]
    for i in range(14):
        A(f"buffer_load_dwordx4 v[{64+4*i}:{67+4*i}], v57, s[32:35], {so[i>>1]} offen offset:{2048*(i&1)} {lpol}")
    A(f"buffer_load_dword v120, v60, s[44:47], s22 offen {lpol}")
    A("s_waitcnt vmcnt(0)")
    sentinel(list(range(64, 121)), "v56")
    A("s_cbranch_vccz L_aok")
    retry("s20", "L_apoll")
    A("L_aok:")
    stamp()
    A("s_waitcnt lgkmcnt(0)")
    for i in range(14):
        d = 32 + 4 * (i & 1)
        A(f"v_mfma_f32_16x16x32_bf16 v[{d}:{d+3}], v[{64+4*i}:{67+4*i}], v[{192+4*i}:{195+4*i}], {'0' if i < 2 else f'v[{d}:{d+3}]'}")
    A("v_pk_add_f32 v[32:33], v[32:33], v[36:37]"); A("v_pk_add_f32 v[34:35], v[34:35], v[38:39]")
    A("s_mov_b32 exec_hi, 0"); A(f"ds_write_b128 v58, v[32:35] offset:{L_RED}"); A("s_mov_b64 exec, -1")
    A("s_waitcnt lgkmcnt(0)"); A("s_barrier")
    A("s_cmp_lg_u32 s3, 0"); A("s_cbranch_scc1 L_fin")
    for w in range(4):
        A(f"ds_read_b32 v{24+2*w}, v59 offset:{L_RED + 512*w}"); A(f"ds_read_b32 v{25+2*w}, v59 offset:{L_RED + 512*w + 32}")
    A("s_waitcnt lgkmcnt(0)")
    A("v_pk_add_f32 v[24:25], v[24:25], v[26:27]"); A("v_pk_add_f32 v[28:29], v[28:29], v[30:31]"); A("v_pk_add_f32 v[24:25], v[24:25], v[28:29]")
    A("""
    v_cvt_pk_bf16_f32 v26, v24, v25
    v_lshlrev_b32 v28, 16, v120
    v_and_b32 v29, 0xffff0000, v120
    v_lshlrev_b32 v24, 16, v26
    v_and_b32 v25, 0xffff0000, v26
    v_pk_add_f32 v[24:25], v[24:25], v[28:29]
    v_cvt_pk_bf16_f32 v26, v24, v25
    buffer_store_dword v26, v60, s[64:67], s21 offen
    """)
    A(";TAILEND")
    A("L_fin:")
    if stamps & (3 | 8 | 16):
        ns[0] = n_keep
        stamp(1)
        A("s_waitcnt lgkmcnt(0)")
        A("s_lshl_b32 s14, s2, 2"); A("s_add_u32 s14, s14, s3"); A("s_lshl_b32 s14, s14, 7"); A("s_add_u32 s14, s14, 0x3000000")
        A("v_mov_b32 v3, 0"); A("s_mov_b64 exec, 1")
        for i in range(ns[0]):
            A(f"v_mov_b32 v8, s{84+2*i}"); A(f"v_mov_b32 v9, s{85+2*i}")
            A(f"buffer_store_dwordx2 v[8:9], v3, s[44:47], s14 offen offset:{8*i}")
    A("L_end:"); A("s_endpgm")
    if warm:
        A("L_warm:"); A("s_mov_b64 exec, 0"); A("s_branch L_pad0")
        A("L_padend:"); A("s_mov_b64 exec, -1"); A("s_branch L_back")
    A('.section .rodata,"a"'); A(".p2align 6"); A(f".amdhsa_kernel {KN}")
    for l in ("next_free_vgpr 512", "next_free_sgpr 102", "accum_offset 256", "group_segment_fixed_size 0", "kernarg_size 96",
              "user_sgpr_count 2", "user_sgpr_kernarg_segment_ptr 1", "system_sgpr_workgroup_id_x 1", "float_denorm_mode_32 3"):
        A(f".amdhsa_{l}")
    A(".end_amdhsa_kernel")
    txt = A.render()
    if warm: txt = add_pads(txt, warm)
    return txt

if __name__ == "__main__":
    out = sys.argv[1]
    kw = {}
    for kv in sys.argv[2:]:
        k, v = kv.split("=")
        if k.endswith("pol"): kw[k] = v.replace("+", " ")
        elif k in ("GS", "CP", "PP", "RP"): kw[k] = tuple(int(t) for t in v.split(",") if t)
        else: kw[k] = int(v)
    open(out, "w").write(gen(**kw))
```
